```python
import torch

def _softmax(x, axis=-1):
    return torch.softmax(x, dim=axis)
def _gelu(x):
    return torch.nn.functional.gelu(x, approximate="tanh")
def _silu(x):
    return torch.nn.functional.silu(x)
def _sigmoid(x):
    return torch.sigmoid(x)
def _layernorm(x, axis=-1, eps=1e-5):
    m = x.mean(dim=axis, keepdim=True)
    v = x.var(dim=axis, keepdim=True, unbiased=False)
    return (x - m) / torch.sqrt(v + eps)
def _scatter_add(tgt, idx, src, axis=0):
    return tgt.clone().index_add_(axis, idx, src)
def _segment_sum(src, seg, n):
    out = torch.zeros((n,) + src.shape[1:], dtype=src.dtype)
    return out.index_add_(0, seg, src)
def _pad(x, pw):
    flat = tuple(v for pair in reversed(pw) for v in pair)
    return torch.nn.functional.pad(x, flat)

kernel_name = 'recurrent_scan__linear_kernel_hedgehog__glu_gated_geglu__prompt'

def setup_inputs():

    _w = (lambda a: (lambda t: t.to(torch.bfloat16) if t.is_floating_point() else t)(torch.as_tensor(a)))
    def _A_setup():
        B, S, D, H = 1, 2048, 640, 32
        Dh = D // H
        return {
            "x": _w((lambda *s: torch.randn(*s, dtype=torch.bfloat16) * 0.05)(B, S, D)),
            "wqkv": _w((lambda *s: torch.randn(*s, dtype=torch.bfloat16) * 0.8)(D, 3 * D)),
            "w_phi": _w((lambda *s: torch.randn(*s, dtype=torch.bfloat16) * 0.8)(H, Dh, Dh) * (Dh ** -0.5)),
            "wo": _w((lambda *s: torch.randn(*s, dtype=torch.bfloat16) * 0.8)(D, D)),
        }
    _A_in = _A_setup()

    def _B_setup():
        B, S, Dm, Df = 1, 2048, 640, 1728
        return {
            "x": _w((lambda *s: torch.randn(*s, dtype=torch.bfloat16) * 0.05)(B, S, Dm)),
            "w_gate": _w((lambda *s: torch.randn(*s, dtype=torch.bfloat16) * 0.2)(Dm, Df) * (Dm ** -0.5)),
            "w_up": _w((lambda *s: torch.randn(*s, dtype=torch.bfloat16) * 0.2)(Dm, Df) * (Dm ** -0.5)),
            "w_down": _w((lambda *s: torch.randn(*s, dtype=torch.bfloat16) * 0.2)(Df, Dm) * (Df ** -0.5)),
        }
    _B_in = _B_setup()

    return {
        "A_x": _A_in["x"],
        "A_wqkv": _A_in["wqkv"],
        "A_w_phi": _A_in["w_phi"],
        "A_wo": _A_in["wo"],
        "B_x": _B_in["x"],
        "B_w_gate": _B_in["w_gate"],
        "B_w_up": _B_in["w_up"],
        "B_w_down": _B_in["w_down"],
    }

def reference(A_x, A_wqkv, A_w_phi, A_wo, B_x, B_w_gate, B_w_up, B_w_down):
    def _A_ref(x, wqkv, w_phi, wo):
        B, S, D = x.shape
        H = 32; Dh = D // H
        qkv = (lambda x, *d: x.permute(*d))((x @ wqkv).reshape(B, S, 3, H, Dh), 2, 0, 3, 1, 4)
        q, k, v = qkv[0], qkv[1], qkv[2]
        pq = torch.einsum("bhsd,hdf->bhsf", q, w_phi)
        pk = torch.einsum("bhsd,hdf->bhsf", k, w_phi)
        phi_q = torch.concatenate([_softmax(pq, axis=-1), _softmax(-pq, axis=-1)], axis=-1)
        phi_k = torch.concatenate([_softmax(pk, axis=-1), _softmax(-pk, axis=-1)], axis=-1)
        kv = torch.einsum("bhsf,bhsd->bhfd", phi_k, v)
        z  = torch.einsum("bhsf->bhf", phi_k)
        num = torch.einsum("bhqf,bhfd->bhqd", phi_q, kv)
        den = torch.einsum("bhqf,bhf->bhq", phi_q, z)[..., None] + 1e-6
        o = num / den
        return (lambda x, *d: x.permute(*d))(o, 0, 2, 1, 3).reshape(B, S, D) @ wo

    def _B_ref(x, w_gate, w_up, w_down):
        g = torch.einsum("bsd,df->bsf", x, w_gate)
        u = torch.einsum("bsd,df->bsf", x, w_up)
        h = _gelu(g) * u
        return torch.einsum("bsf,fd->bsd", h, w_down)

    x = A_x
    xn = _layernorm(x, axis=-1)
    s = _A_ref(xn, A_wqkv, A_w_phi, A_wo)
    g = _silu(_B_ref(xn, B_w_gate, B_w_up, B_w_down))
    return x + s * g
```

```python
import re, sys
raw = open("naive_raw.s").read()
raw = re.sub(r"\.amdgpu_metadata.*?\.end_amdgpu_metadata", "", raw, flags=re.S)
raw = "\n".join(l for l in raw.splitlines() if not re.search(r"private_segment|dynamic_stack|user_sgpr_dispatch|user_sgpr_queue|kernarg_preload|__hip_cuid|\.ident|\.addrsig|\.amdgcn_target|code_object_version", l))
raw = re.sub(r"\.section\s+\.AMDGPU\.gpr_maximums.*?\n", "\n", raw)
base_launch = """; @launch kernel=ln_kernel grid=(8,1,1) block=(256,1,1) lds=0
; @launch kernel=qkv_kernel grid=(2048,1,1) block=(256,1,1) lds=0
; @launch kernel=gu_kernel grid=(2048,1,1) block=(256,1,1) lds=0
; @launch kernel=phik_kernel grid=(256,1,1) block=(256,1,1) lds=0
; @launch kernel=kv_kernel grid=(105,1,1) block=(256,1,1) lds=0
; @launch kernel=o_kernel grid=(256,1,1) block=(256,1,1) lds=0
; @launch kernel=fin_kernel grid=(2560,1,1) block=(128,1,1) lds=0
"""
def kd(name, vgpr, accum):
    return f"""
.section .rodata,"a"
.p2align 6
.amdhsa_kernel {name}
  .amdhsa_next_free_vgpr {vgpr}
  .amdhsa_next_free_sgpr 102
  .amdhsa_accum_offset {accum}
  .amdhsa_group_segment_fixed_size 0
  .amdhsa_kernarg_size 88
  .amdhsa_user_sgpr_count 2
  .amdhsa_user_sgpr_kernarg_segment_ptr 1
  .amdhsa_system_sgpr_workgroup_id_x 1
.end_amdhsa_kernel
.text
"""
def tail(amp):
    return f"""
    s_load_dwordx2 s[4:5], s[0:1], 72
    s_waitcnt lgkmcnt(0)
    s_mov_b32 s8, s4
    s_mov_b32 s9, s5
    s_mov_b32 s10, 64
    s_mov_b32 s11, 0x00020000
    v_mov_b32 v4, s14
    s_lshl_b32 s3, s2, 2
    v_mov_b32 v5, s3
    buffer_store_dword v4, v5, s[8:11], 0 offen
    s_mul_i32 s15, s14, {amp}
    s_memtime s[30:31]
    s_waitcnt lgkmcnt(0)
Lspin:
    s_sleep 8
    s_memtime s[32:33]
    s_waitcnt lgkmcnt(0)
    s_sub_u32 s32, s32, s30
    s_cmp_lt_u32 s32, s15
    s_cbranch_scc1 Lspin
Lend:
    s_endpgm
"""
def probeA(amp):
    s = """.text
.globl probe_kernel
.p2align 8
.type probe_kernel,@function
probe_kernel:
    s_cmp_ge_u32 s2, 256
    s_cbranch_scc1 Lend
    s_memtime s[12:13]
    s_load_dwordx2 s[40:41], s[0:1], 0
    s_load_dwordx2 s[42:43], s[0:1], 8
    s_load_dwordx2 s[44:45], s[0:1], 32
    s_load_dwordx2 s[46:47], s[0:1], 40
    s_load_dwordx2 s[48:49], s[0:1], 48
    s_load_dwordx2 s[50:51], s[0:1], 56
    s_lshl_b32 s3, s2, 13
    v_lshlrev_b32 v1, 4, v0
    v_add_u32 v1, s3, v1
    v_add_u32 v2, 4096, v1
    s_waitcnt lgkmcnt(0)
"""
    for i in range(6):
        s += f"    global_load_dwordx4 v[{16+8*i}:{19+8*i}], v1, s[{40+2*i}:{41+2*i}]\n"
        s += f"    global_load_dwordx4 v[{20+8*i}:{23+8*i}], v2, s[{40+2*i}:{41+2*i}]\n"
    s += """    s_waitcnt vmcnt(0)
    s_memtime s[14:15]
    s_waitcnt lgkmcnt(0)
    s_sub_u32 s14, s14, s12
""" + tail(amp) + kd("probe_kernel", 256, 256)
    return "; @launch kernel=probe_kernel grid=(256,1,1) block=(256,1,1) lds=131072\n", s
def probeB(amp):
    s = """.text
.globl probe_kernel
.p2align 8
.type probe_kernel,@function
probe_kernel:
    s_cmp_ge_u32 s2, 256
    s_cbranch_scc1 Lend
    v_and_b32 v1, 63, v0
    v_lshlrev_b32 v2, 3, v1
    s_memtime s[12:13]
    s_waitcnt lgkmcnt(0)
"""
    c = 0
    for m in range(440):
        t = m % 5
        s += f"    v_mfma_f32_32x32x16_bf16 v[{16+16*t}:{31+16*t}], v[160:163], a[{4*(m%40)}:{4*(m%40)+3}], v[{16+16*t}:{31+16*t}]\n"
        for j in range(2):
            s += f"    ds_read_b64_tr_b16 v[{120+2*(c%16)}:{121+2*(c%16)}], v2 offset:{512*(c%16)}\n"; c += 1
        for j in range(3):
            s += f"    v_fma_f32 v{100+c%16}, v200, v201, v{100+c%16}\n"; c += 1
    s += """    s_waitcnt lgkmcnt(0)
    s_memtime s[14:15]
    s_waitcnt lgkmcnt(0)
    s_sub_u32 s14, s14, s12
""" + tail(amp) + kd("probe_kernel", 512, 256)
    return "; @launch kernel=probe_kernel grid=(256,1,1) block=(256,1,1) lds=65536\n", s
hdr = '.amdgcn_target "amdgcn-amd-amdhsa--gfx950"\n'
open("diag_base.s","w").write(base_launch + hdr + raw)
for nm, fn in [("A", probeA), ("B", probeB)]:
    l, s = fn(200)
    open(f"diag_{nm}.s","w").write(l + base_launch + hdr + s + raw)
```

```python
import re, sys
raw = open("naive_raw.s").read()
raw = re.sub(r"\.amdgpu_metadata.*?\.end_amdgpu_metadata", "", raw, flags=re.S)
raw = "\n".join(l for l in raw.splitlines() if not re.search(r"private_segment|dynamic_stack|user_sgpr_dispatch|user_sgpr_queue|kernarg_preload|__hip_cuid|\.ident|\.addrsig|\.amdgcn_target|code_object_version", l))
raw = re.sub(r"\.section\s+\.AMDGPU\.gpr_maximums.*?\n", "\n", raw)
base_launch = """; @launch kernel=ln_kernel grid=(8,1,1) block=(256,1,1) lds=0
; @launch kernel=qkv_kernel grid=(2048,1,1) block=(256,1,1) lds=0
; @launch kernel=gu_kernel grid=(2048,1,1) block=(256,1,1) lds=0
; @launch kernel=phik_kernel grid=(256,1,1) block=(256,1,1) lds=0
; @launch kernel=kv_kernel grid=(105,1,1) block=(256,1,1) lds=0
; @launch kernel=o_kernel grid=(256,1,1) block=(256,1,1) lds=0
; @launch kernel=fin_kernel grid=(2560,1,1) block=(128,1,1) lds=0
"""
def kd(name, vgpr, accum):
    return f"""
.section .rodata,"a"
.p2align 6
.amdhsa_kernel {name}
  .amdhsa_next_free_vgpr {vgpr}
  .amdhsa_next_free_sgpr 102
  .amdhsa_accum_offset {accum}
  .amdhsa_group_segment_fixed_size 0
  .amdhsa_kernarg_size 88
  .amdhsa_user_sgpr_count 2
  .amdhsa_user_sgpr_kernarg_segment_ptr 1
  .amdhsa_system_sgpr_workgroup_id_x 1
.end_amdhsa_kernel
.text
"""
def tail(amp):
    return f"""
    s_load_dwordx2 s[4:5], s[0:1], 72
    s_waitcnt lgkmcnt(0)
    s_mov_b32 s8, s4
    s_mov_b32 s9, s5
    s_mov_b32 s10, 64
    s_mov_b32 s11, 0x00020000
    v_mov_b32 v4, s14
    s_lshl_b32 s3, s2, 2
    v_mov_b32 v5, s3
    buffer_store_dword v4, v5, s[8:11], 0 offen
    s_mul_i32 s15, s14, {amp}
    s_memtime s[30:31]
    s_waitcnt lgkmcnt(0)
Lspin:
    s_sleep 8
    s_memtime s[32:33]
    s_waitcnt lgkmcnt(0)
    s_sub_u32 s32, s32, s30
    s_cmp_lt_u32 s32, s15
    s_cbranch_scc1 Lspin
Lend:
    s_endpgm
"""
def probeA(amp):
    s = """.text
.globl probe_kernel
.p2align 8
.type probe_kernel,@function
probe_kernel:
    s_cmp_ge_u32 s2, 256
    s_cbranch_scc1 Lend
    s_memtime s[12:13]
    s_load_dwordx2 s[40:41], s[0:1], 0
    s_load_dwordx2 s[42:43], s[0:1], 8
    s_load_dwordx2 s[44:45], s[0:1], 32
    s_load_dwordx2 s[46:47], s[0:1], 40
    s_load_dwordx2 s[48:49], s[0:1], 48
    s_load_dwordx2 s[50:51], s[0:1], 56
    s_lshl_b32 s3, s2, 13
    v_lshlrev_b32 v1, 4, v0
    v_add_u32 v1, s3, v1
    v_add_u32 v2, 4096, v1
    s_waitcnt lgkmcnt(0)
"""
    for i in range(6):
        s += f"    global_load_dwordx4 v[{16+8*i}:{19+8*i}], v1, s[{40+2*i}:{41+2*i}]\n"
        s += f"    global_load_dwordx4 v[{20+8*i}:{23+8*i}], v2, s[{40+2*i}:{41+2*i}]\n"
    s += """    s_waitcnt vmcnt(0)
    s_memtime s[14:15]
    s_waitcnt lgkmcnt(0)
    s_sub_u32 s14, s14, s12
""" + tail(amp) + kd("probe_kernel", 256, 256)
    return "; @launch kernel=probe_kernel grid=(256,1,1) block=(256,1,1) lds=131072\n", s
def probeB(amp):
    s = """.text
.globl probe_kernel
.p2align 8
.type probe_kernel,@function
probe_kernel:
    s_cmp_ge_u32 s2, 256
    s_cbranch_scc1 Lend
    v_and_b32 v1, 63, v0
    v_lshlrev_b32 v2, 3, v1
    s_memtime s[12:13]
    s_waitcnt lgkmcnt(0)
"""
    c = 0
    for m in range(440):
        t = m % 5
        s += f"    v_mfma_f32_32x32x16_bf16 v[{16+16*t}:{31+16*t}], v[160:163], a[{4*(m%40)}:{4*(m%40)+3}], v[{16+16*t}:{31+16*t}]\n"
        for j in range(2):
            s += f"    ds_read_b64_tr_b16 v[{120+2*(c%16)}:{121+2*(c%16)}], v2 offset:{512*(c%16)}\n"; c += 1
        for j in range(3):
            s += f"    v_fma_f32 v{100+c%16}, v200, v201, v{100+c%16}\n"; c += 1
    s += """    s_waitcnt lgkmcnt(0)
    s_memtime s[14:15]
    s_waitcnt lgkmcnt(0)
    s_sub_u32 s14, s14, s12
""" + tail(amp) + kd("probe_kernel", 512, 256)
    return "; @launch kernel=probe_kernel grid=(256,1,1) block=(256,1,1) lds=65536\n", s
hdr = '.amdgcn_target "amdgcn-amd-amdhsa--gfx950"\n'
open("diag_base.s","w").write(base_launch + hdr + raw)
for nm, fn in [("A", probeA), ("B", probeB)]:
    l, s = fn(200)
    open(f"diag_{nm}.s","w").write(l + base_launch + hdr + s + raw)
def probeC(amp, depth=16):
    s = """.text
.globl probe_kernel
.p2align 8
.type probe_kernel,@function
probe_kernel:
    s_cmp_ge_u32 s2, 256
    s_cbranch_scc1 Lend
    s_memtime s[12:13]
    s_and_b32 s22, s2, 7
    s_lshr_b32 s22, s22, 1      ; buffer index 0..3 -> kernarg offsets 0,8,40,48
    s_load_dwordx2 s[40:41], s[0:1], 0
    s_load_dwordx2 s[42:43], s[0:1], 8
    s_load_dwordx2 s[44:45], s[0:1], 40
    s_load_dwordx2 s[46:47], s[0:1], 48
    s_waitcnt lgkmcnt(0)
    s_cmp_eq_u32 s22, 1
    s_cselect_b32 s40, s42, s40
    s_cselect_b32 s41, s43, s41
    s_cmp_eq_u32 s22, 2
    s_cselect_b32 s40, s44, s40
    s_cselect_b32 s41, s45, s41
    s_cmp_eq_u32 s22, 3
    s_cselect_b32 s40, s46, s40
    s_cselect_b32 s41, s47, s41
    s_mov_b32 s16, s40
    s_mov_b32 s17, s41
    s_mov_b32 s18, 0x200000
    s_mov_b32 s19, 0x00020000
    s_lshr_b32 s27, s2, 6
    s_lshl_b32 s27, s27, 19
    v_lshlrev_b32 v2, 4, v0
    s_mov_b32 s20, %d
Lloop:
""" % (128//depth)
    for d in range(depth):
        s += f"    buffer_load_dwordx4 v[{16+4*d}:{19+4*d}], v2, s[16:19], s27 offen\n"
        s += f"    s_add_u32 s27, s27, 4096\n"
        s += f"    s_waitcnt vmcnt({depth-1})\n"
    s += """    s_sub_u32 s20, s20, 1
    s_cmp_lg_u32 s20, 0
    s_cbranch_scc1 Lloop
    s_waitcnt vmcnt(0)
    s_memtime s[14:15]
    s_waitcnt lgkmcnt(0)
    s_sub_u32 s14, s14, s12
""" + tail(amp) + kd("probe_kernel", 256, 256)
    return "; @launch kernel=probe_kernel grid=(256,1,1) block=(256,1,1) lds=131072\n", s
def probeLat(amp):
    s = """.text
.globl probe_kernel
.p2align 8
.type probe_kernel,@function
probe_kernel:
    s_cmp_ge_u32 s2, 1
    s_cbranch_scc1 Lend
    s_load_dwordx2 s[44:45], s[0:1], 40
    v_lshlrev_b32 v2, 2, v0
    s_waitcnt lgkmcnt(0)
    global_load_dword v4, v2, s[44:45]
    s_waitcnt vmcnt(0)
    v_add_u32 v2, 0x40000, v2
    s_memtime s[12:13]
    s_waitcnt lgkmcnt(0)
"""
    for i in range(8):
        s += """    global_load_dword v4, v2, s[44:45]
    s_waitcnt vmcnt(0)
    v_add_u32 v2, 0x21100, v2
"""
    s += """
    s_memtime s[14:15]
    s_waitcnt lgkmcnt(0)
    s_sub_u32 s14, s14, s12
""" + tail(amp) + kd("probe_kernel", 256, 256)
    return "; @launch kernel=probe_kernel grid=(1,1,1) block=(64,1,1) lds=0\n", s
def probeEmpty(n):
    s = """.text
.globl probe_kernel
.p2align 8
.type probe_kernel,@function
probe_kernel:
    s_endpgm
""" + kd("probe_kernel", 256, 256)
    return "; @launch kernel=probe_kernel grid=(256,1,1) block=(512,1,1) lds=131072\n"*n, s
for nm, fn, a in [("C", probeC, 200), ("L", probeLat, 200), ("E", probeEmpty, 200)]:
    l, s = fn(a)
    open(f"diag_{nm}.s","w").write(l + base_launch + hdr + s + raw)
```

```python
import re

TRANS = ("v_exp_f32", "v_log_f32", "v_rcp_f32", "v_rsq_f32", "v_sqrt_f32", "v_sin_f32", "v_cos_f32")

def regs_of(tok):
    tok = tok.strip()
    tok = re.sub(r"^-", "", tok)
    m = re.match(r"^abs\((.*)\)$", tok)
    if m: tok = m.group(1)
    m = re.match(r"^\|(.*)\|$", tok)
    if m: tok = m.group(1)
    m = re.match(r"^([vas])(\d+)$", tok)
    if m: return {(m.group(1), int(m.group(2)))}
    m = re.match(r"^([vas])\[(\d+):(\d+)\]$", tok)
    if m: return {(m.group(1), i) for i in range(int(m.group(2)), int(m.group(3)) + 1)}
    if tok == "vcc": return {("s", "vcc")}
    if tok == "m0": return {("s", "m0")}
    if tok == "exec": return {("s", "exec")}
    return set()

class Ins:
    def __init__(self, text):
        self.text = text
        t = text.split(";")[0].strip()
        self.is_label = t.endswith(":")
        self.is_dir = t.startswith(".")
        parts = t.split(None, 1)
        self.mn = parts[0] if parts else ""
        rest = parts[1] if len(parts) > 1 else ""
        bm = " ".join(re.findall(r"\s\w+:\[[^\]]*\]", rest))
        rest = re.sub(r"\s\w+:\[[^\]]*\]", "", rest)
        ops = [o.strip() for o in rest.split(",")] if rest else []
        self.mods = ""
        if ops:
            lp = ops[-1].split(None, 1)
            if len(lp) > 1:
                ops[-1] = lp[0]; self.mods = lp[1]
        self.mods += " " + bm
        self.ops = ops
        mn = re.sub(r"_(e32|e64|dpp|sdwa)$", "", self.mn)
        self.base = mn
        self.kind = "other"; self.dst = set(); self.src = set(); self.srcC = set(); self.srcAB = set(); self.sdata = set()
        self.passes = 0
        R = regs_of
        if self.is_label or self.is_dir or not mn: return
        if mn.startswith("v_mfma"):
            self.kind = "mfma"; self.dst = R(ops[0]); self.srcAB = R(ops[1]) | R(ops[2]); self.srcC = R(ops[3]); self.src = self.srcAB | self.srcC
            self.passes = 8 if "32x32" in mn else 4
        elif mn.startswith("v_"):
            self.kind = "valu"
            self.dst = R(ops[0]); self.src = set().union(*[R(o) for o in ops[1:]]) if len(ops) > 1 else set()
            if mn in ("v_fmac_f32", "v_dot2c_f32_bf16") or "dpp" in self.mn or "row_" in self.mods or "quad_perm" in self.mods: self.src |= self.dst
            if mn.startswith("v_permlane"): self.dst = R(ops[0]) | R(ops[1]); self.src = set(self.dst)
            if mn in ("v_add_co_u32", "v_addc_co_u32", "v_sub_co_u32"): self.dst |= R(ops[1])
            if mn == "v_cndmask_b32" and len(ops) == 3: self.src |= {("s", "vcc")}
        elif mn.startswith("ds_read"):
            self.kind = "ds"; self.dst = R(ops[0]); self.src = R(ops[1])
        elif mn.startswith("ds_write") or mn.startswith("ds_add"):
            self.kind = "ds"; self.src = set().union(*[R(o) for o in ops])
        elif mn.startswith("ds_swizzle") or mn.startswith("ds_bpermute"):
            self.kind = "ds"; self.dst = R(ops[0]); self.src = set().union(*[R(o) for o in ops[1:]])
        elif mn.startswith("buffer_load") or mn.startswith("global_load"):
            self.kind = "vmem"
            if re.search(r"\blds\b", self.mods) or "_lds_" in mn:
                self.src = set().union(*[R(o) for o in ops]) | {("s", "m0")}; self.isdma = True
            else:
                self.dst = R(ops[0]); self.src = set().union(*[R(o) for o in ops[1:]])
        elif mn.startswith("buffer_store") or mn.startswith("buffer_atomic") or mn.startswith("global_store") or mn.startswith("global_atomic"):
            self.kind = "vmem"; self.src = set().union(*[R(o) for o in ops])
            if "x4" in mn or "x3" in mn: self.sdata = R(ops[0]) if mn.startswith("buffer") else R(ops[1])
            if "atomic" in mn and "sc0" in self.mods: self.dst = R(ops[0])
        elif mn.startswith("s_"):
            self.kind = "salu"
            if mn in ("s_nop", "s_waitcnt", "s_barrier", "s_endpgm", "s_branch", "s_sleep", "s_setprio") or mn.startswith("s_cbranch") or mn.startswith("s_cmp"):
                self.src = set().union(*[R(o) for o in ops]) if ops else set()
            else:
                self.dst = R(ops[0]); self.src = set().union(*[R(o) for o in ops[1:]]) if len(ops) > 1 else set()
    def states(self):
        if self.is_label or self.is_dir or not self.mn: return 0
        if self.mn == "s_nop": return int(self.ops[0], 0) + 1
        return 1

def need(p, c):
    n = 0
    vd = {r for r in p.dst if r[0] in "va"}
    sd = {r for r in p.dst if r[0] == "s"}
    if p.kind == "valu":
        if c.kind == "mfma" and vd & c.src: n = max(n, 2)
        if c.kind == "valu":
            if p.base in TRANS and vd & c.src: n = max(n, 1)
            if c.base in ("v_readfirstlane_b32", "v_readlane_b32") and vd & c.src: n = max(n, 1)
            if (c.base.startswith("v_permlane") or "dpp" in c.mn or "row_" in c.mods or "quad_perm" in c.mods) and vd & c.src: n = max(n, 2)
            if sd & c.src: n = max(n, 4 if c.base in ("v_readlane_b32", "v_writelane_b32") else 2)
            if p.base.startswith("v_dot2") and vd & (c.src | c.dst):
                if not (c.base == p.base and c.dst == p.dst and not (vd & (set().union(*[regs_of(o) for o in c.ops[1:3]])))): n = max(n, 3)
            if ("sdwa" in p.mn or "op_sel" in p.mods) and vd & (c.src | c.dst) and not p.base.startswith("v_pk_"): n = max(n, 1)
        if c.kind in ("vmem", "ds"):
            if sd & c.src: n = max(n, 5)
            if p.base in TRANS and vd & c.src: n = max(n, 1)
            if p.base.startswith("v_dot2") and vd & c.src: n = max(n, 3)
        if c.kind == "salu" and sd & c.src: n = max(n, 4)
    if p.kind == "mfma":
        big = 12 if p.passes == 8 else 8
        if c.kind == "valu" and vd & (c.src | c.dst): n = max(n, big)
        if c.kind in ("vmem", "ds") and vd & (c.src | c.dst): n = max(n, big)
        if c.kind == "mfma":
            if vd & c.srcAB: n = max(n, big)
            if vd & c.srcC and not (c.srcC == p.dst and c.passes == p.passes): n = max(n, 10 if p.passes == 8 else 6)
            if vd & c.dst and not (vd & c.srcC): n = max(n, big)
        if c.kind == "valu" and p.srcC & c.dst: n = max(n, 7 if p.passes == 8 else 3)
    if p.kind == "salu" and ("s", "m0") in p.dst and c.kind == "vmem" and ("s", "m0") in c.src: n = max(n, 1)
    if p.kind == "vmem" and p.sdata:
        if c.kind == "valu" and p.sdata & c.dst: n = max(n, 2)
        elif p.sdata & c.dst: n = max(n, 1)
    return n

class Asm:
    def __init__(self):
        self.lines = []
    def __call__(self, text):
        for l in text.split("\n"):
            l = l.rstrip()
            if l.strip(): self.lines.append(l.strip())
    def label(self, name): self.lines.append(name + ":")
    def render(self):
        out = []; hist = []
        for l in self.lines:
            i = Ins(l)
            if not (i.is_label or i.is_dir or not i.mn):
                req = 0; dist = 0
                for p in reversed(hist):
                    n = need(p, i)
                    if n - dist > req: req = n - dist
                    dist += p.states()
                    if dist >= 24: break
                while req > 0:
                    k = min(req, 16)
                    nop = Ins(f"s_nop {k-1}")
                    out.append("    " + nop.text); hist.append(nop); req -= k
                hist.append(i); hist = hist[-40:]
                out.append("    " + l)
            else:
                out.append(l)
        return "\n".join(out) + "\n"
```

```python
from asmlib import Asm
from layout import *

WSLOT = 24576; XBASE = 98304; PHIB = 147456
C0 = -2.0*0.7978845608028654*1.4426950408889634
LOG2E = 1.4426950408889634
import struct
def f2u(f): return "0x%08x" % struct.unpack("<I", struct.pack("<f", f))[0]

def k1_table(phase_fn=None):
    quarters = [[('S',0),('C',0),('C',1),('KV',0)],
                [('Q',0),('C',2),('C',3),('KV',1)],
                [('Q',1),('C',4),('C',5),('KV',2)],
                [('C',6),('C',7),('C',8),('KV',3)]]
    rolen = {'C':0,'KV':1,'Q':2,'S':3}
    tab = []
    sl = []
    f = 30
    for m in range(2):
        for n in [4,4,4,3,3,3,3,3]:
            sl.append((f, n)); f += n
    for wg in range(256):
        xcd = wg & 7; j = wg >> 3
        R = xcd & 1; Cq = xcd >> 1
        role, col = quarters[Cq][j >> 3]
        rb = R*8 + (j & 7)
        ph = (Cq + 2*R + (rb & 1)) & 3
        u0 = [0,3,5,8][ph] if phase_fn is None else phase_fn(R, Cq, rb, j >> 3)
        af, an = 0, 0
        if role == 'S': af, an = sl[rb]
        if role == 'Q':
            q = col*16 + rb
            if q < 30: af, an = q, 1
        tab.append((rolen[role], rb, col, u0 | (af << 8) | (an << 16)))
    return tab

sX='s[8:11]'; sW='s[12:15]'; sWS='s[16:19]'; sDBG='s[20:23]'; sA='s[24:27]'
ROLE='s28'; RB='s29'; COL='s30'; PAR='s31'
WAVE='s32'; KW='s33'; KX='s34'; KW0='s35'; KX0='s36'; WSTR='s37'; WSTEP='s38'; WEND='s39'
MW='s40'; MX='s41'; IT='s42'
PBASE='s43'; PREG='s44'; PA='s45'; PB='s46'
T0='s47'; T1='s48'; T2='s49'; T3='s50'
pX='s[52:53]'; pQKV='s[54:55]'; pPHI='s[56:57]'; pWO='s[58:59]'; pBX='s[60:61]'; pG='s[62:63]'; pU='s[64:65]'; pD='s[66:67]'
pOUT='s[68:69]'; pDBG='s[70:71]'; pWSp='s[72:73]'
def lo(p): return 's' + p[2:].split(':')[0]
def hi(p): return 's' + p[2:-1].split(':')[1]
def srd(a, s, ptr, size):
    b = int(s[2:].split(':')[0])
    a(f"s_mov_b32 s{b}, {lo(ptr)}\ns_mov_b32 s{b+1}, {hi(ptr)}\ns_mov_b32 s{b+2}, {size}\ns_mov_b32 s{b+3}, 0x00020000")

LANE='v250'; VW=['v240','v241','v242']; VX=['v243','v244']
FA=200; FB=220
NPROD = 48

def gen_k1(a, name="k1_kernel", phase_fn=None, stamp=False):
    a(f".globl {name}\n.p2align 8\n.type {name},@function")
    a.label(name)
    a(f"""
    s_cmp_ge_u32 s2, 256
    s_cbranch_scc1 K1_END
    s_load_dwordx16 s[52:67], s[0:1], 0
    s_load_dwordx4 s[68:71], s[0:1], 64
    s_load_dwordx2 s[72:73], s[0:1], 80
    s_getpc_b64 s[4:5]
K1_PC:
    s_lshl_b32 s3, s2, 4
    s_add_u32 s3, s3, K1_TAB-K1_PC
    s_load_dwordx4 s[28:31], s[4:5], s3
    v_and_b32 {LANE}, 63, v0
    v_lshrrev_b32 v1, 6, v0
    v_readfirstlane_b32 {WAVE}, v1
    """)
    if stamp: a("s_memtime s[90:91]")
    a("s_waitcnt lgkmcnt(0)")
    srd(a, sX, pX, 2621440); srd(a, sWS, pWSp, WS_SIZE); srd(a, sDBG, pDBG, 256)
    srd(a, sW, pQKV, 640*3840); srd(a, sA, pQKV, 640*3840)
    a(f"""
    s_cmp_eq_u32 {ROLE}, 3
    s_cbranch_scc1 K1_SPARE
    s_cmp_eq_u32 {ROLE}, 2
    s_cbranch_scc1 K1_QAUX
K1_GEMM:
    """)
    a(f"""
    s_and_b32 {T0}, {PAR}, 0xff
    s_lshl_b32 {KX}, {T0}, 7
    s_mov_b32 {KX0}, {KX}
    s_lshr_b32 {T1}, {WAVE}, 2            ; region
    s_and_b32 {T2}, {WAVE}, 3             ; kgroup
    s_mov_b32 {WSTR}, 3840
    s_cmp_lg_u32 {ROLE}, 0
    s_cbranch_scc1 K1_SETQKV
    ; role C
    s_mov_b32 {WSTR}, 3456
    s_cmp_eq_u32 {T1}, 0
    s_cselect_b32 s12, {lo(pG)}, {lo(pU)}
    s_cselect_b32 s13, {hi(pG)}, {hi(pU)}
    s_mov_b32 s14, {640*3456}
    s_mul_i32 {PBASE}, {COL}, 192
    s_mov_b32 {PREG}, 0
    s_mov_b32 {PA}, 40
    s_mov_b32 {PB}, 80
    s_branch K1_SET2
K1_SETQKV:
    s_mul_i32 {PBASE}, {COL}, 320
    s_mov_b32 {PREG}, 160
    s_mov_b32 {PA}, 40
    s_mov_b32 {PB}, 80
    s_cmp_eq_u32 {ROLE}, 2
    s_cbranch_scc1 K1_SET2
    s_mul_i32 {PBASE}, {COL}, 160
    s_add_u32 {PBASE}, {PBASE}, 640
    s_mov_b32 {PREG}, 80
    s_mov_b32 {PA}, 640
    s_mov_b32 {PB}, 40
K1_SET2:
    s_mul_i32 {KW}, {T0}, {WSTR}
    s_lshl_b32 {KW}, {KW}, 6
    s_mov_b32 {KW0}, {KW}
    s_lshl_b32 {WSTEP}, {WSTR}, 5
    s_mul_i32 {WEND}, {WSTR}, 640
    ; M0 bases
    s_mul_i32 {MW}, {T1}, 12288
    s_lshl_b32 {T3}, {T2}, 10
    s_add_u32 {MW}, {MW}, {T3}
    s_lshl_b32 {MX}, {WAVE}, 11
    s_add_u32 {MX}, {MX}, {XBASE}
    v_lshrrev_b32 v1, 3, {LANE}           ; row8
    v_and_b32 v2, 7, {LANE}               ; pos
    v_lshrrev_b32 v3, 1, v1               ; row8>>1
    v_xor_b32 v4, v2, v3
    v_lshlrev_b32 v4, 4, v4
    s_lshl_b32 {T3}, {RB}, 7
    s_lshl_b32 s3, {WAVE}, 4
    s_add_u32 {T3}, {T3}, s3
    v_add_u32 v5, {T3}, v1
    v_mul_u32_u24 v5, 1280, v5
    v_add_u32 {VX[0]}, v5, v4
    v_xor_b32 v4, 64, v4
    v_add_u32 {VX[1]}, v5, v4
    v_add_u32 {VX[1]}, {8*1280}, {VX[1]}
    s_mov_b32 m0, {MX}
    buffer_load_dwordx4 {VX[0]}, {sX}, {KX} offen lds
    s_add_u32 m0, {MX}, 1024
    buffer_load_dwordx4 {VX[1]}, {sX}, {KX} offen lds
    v_and_b32 v3, 1, v3
    s_lshl_b32 s3, {T1}, 1
    v_xor_b32 v3, s3, v3
    v_lshlrev_b32 v3, 1, v3
    v_xor_b32 v3, v2, v3
    s_lshl_b32 s3, {T2}, 3
    v_add_u32 v6, s3, v1
    v_mul_lo_u32 v6, v6, {WSTR}
    s_mul_i32 s3, {T1}, {PREG}
    s_add_u32 s3, s3, {PBASE}
    s_lshl_b32 s3, s3, 1
    v_add_u32 v6, s3, v6
    s_cmp_eq_u32 {ROLE}, 0
    s_cselect_b32 s3, 24, 20
    """)
    for u in range(3):
        a(f"""
        v_add_u32 v4, {8*u}, v3
        v_mul_u32_u24 v5, 52, v4
        v_lshrrev_b32 v5, 8, v5               ; seg = c16/5
        v_mul_u32_u24 v7, 5, v5
        v_sub_u32 v7, v4, v7
        v_lshlrev_b32 v7, 3, v7               ; columns
        v_and_b32 v8, 1, v5
        v_mad_u32_u24 v7, v8, {PA}, v7
        v_lshrrev_b32 v8, 1, v5
        v_mad_u32_u24 v7, v8, {PB}, v7
        v_lshl_add_u32 {VW[u]}, v7, 1, v6
        """)
        if u == 2:
            a(f"""
            v_cmp_gt_u32 vcc, s3, v4
            v_mov_b32 v8, 0x40000000
            v_cndmask_b32 {VW[u]}, v8, {VW[u]}, vcc
            """)
    def adv_x():
        a(f"""
        s_add_u32 {KX}, {KX}, 128
        s_cmp_eq_u32 {KX}, 1280
        s_cselect_b32 {KX}, 0, {KX}
        s_cmp_eq_u32 {KX}, {KX0}
        s_cselect_b32 s10, 0, s10
        """)
    def adv_w():
        a(f"""
        s_add_u32 {KW}, {KW}, {WSTEP}
        s_cmp_eq_u32 {KW}, {WEND}
        s_cselect_b32 {KW}, 0, {KW}
        s_cmp_eq_u32 {KW}, {KW0}
        s_cselect_b32 s14, 0, s14
        """)
    def dma_w(slot):
        L = []
        for u in range(3):
            L.append(f"s_add_u32 m0, {MW}, {slot*WSLOT + u*4096}\nbuffer_load_dwordx4 {VW[u]}, {sW}, {KW} offen lds")
        return L
    def dma_x(xs):
        return [f"s_add_u32 m0, {MX}, {xs*16384 + i*1024}\nbuffer_load_dwordx4 {VX[i]}, {sX}, {KX} offen lds" for i in range(2)]
    adv_x()
    for s in range(3):
        for t in dma_w(s): a(t)
        adv_w()
    a(f"""
    s_cmp_lg_u32 {ROLE}, 0
    s_cbranch_scc1 K1_QKVLOOP
    """)

    def mainloop(tag, ntt, nct, acc0, RW, RX, FA, FB):
        def reads(jj, s, F):
            L = []
            xs = (jj >> 1) & 1; ks = (jj & 1)*2 + s
            for t in range(ntt):
                L.append(f"ds_read_b128 v[{F+4*t}:{F+4*t+3}], {RX[ks]} offset:{xs*16384 + t*4096}")
            for c in range(nct):
                b = F + 4*ntt + 4*c
                for i in range(2):
                    L.append(f"ds_read_b64_tr_b16 v[{b+2*i}:{b+2*i+1}], {RW[jj>>1][c]} offset:{(jj&1)*WSLOT + (16*s+4*i)*128}")
            return L
        def mfmas(F):
            L = []
            for c in range(nct):
                for t in range(ntt):
                    d = acc0 + 16*(t*nct + c)
                    b = F + 4*ntt + 4*c
                    L.append(f"v_mfma_f32_32x32x16_bf16 v[{d}:{d+15}], v[{b}:{b+3}], v[{F+4*t}:{F+4*t+3}], v[{d}:{d+15}]")
            return L
        def weave(M, R, per):
            R = list(R)
            for m in M:
                a(m)
                for _ in range(per):
                    if R: a(R.pop(0))
            for r in R: a(r)
        for r in range(acc0, acc0 + 16*ntt*nct): a(f"v_mov_b32 v{r}, 0")
        a(f"s_mov_b32 {IT}, 5")
        a("s_waitcnt vmcnt(6)\ns_barrier")
        for t in reads(0, 0, FA): a(t)
        for t in dma_x(1): a(t)
        adv_x()
        for t in dma_w(3): a(t)
        adv_w()
        a(f"s_branch {tag}_ENTRY")
        a.label(f"{tag}_LOOP")
        for jj in range(4):
            a(f"s_waitcnt vmcnt({6 if jj%2==0 else 8}) lgkmcnt(0)\ns_barrier")
            R = reads(jj, 0, FA)
            D = []
            if jj % 2 == 0: D += dma_x(((jj >> 1) + 1) & 1)
            D += dma_w((jj + 3) & 3)
            weave(mfmas(FB), R + D, 3)
            if jj % 2 == 0: adv_x()
            adv_w()
            if jj == 0: a.label(f"{tag}_ENTRY")
            a("s_waitcnt lgkmcnt(0)")
            weave(mfmas(FA), reads(jj, 1, FB), 3)
        a(f"""
        s_sub_u32 {IT}, {IT}, 1
        s_cmp_lg_u32 {IT}, 0
        s_cbranch_scc1 {tag}_LOOP
        s_waitcnt lgkmcnt(0)
        """)
        for m in mfmas(FB): a(m)

    def xread_addrs(RX, tokbase_s):
        a(f"""
        v_and_b32 v1, 31, {LANE}
        v_lshrrev_b32 v2, 5, {LANE}
        v_bfe_u32 v3, {LANE}, 1, 3
        v_xor_b32 v3, v2, v3
        v_lshlrev_b32 v3, 4, v3
        v_add_u32 v1, {tokbase_s}, v1
        v_lshl_add_u32 v3, v1, 7, v3
        v_add_u32 {RX[0]}, {XBASE}, v3
        """)
        for s in range(1, 4): a(f"v_xor_b32 {RX[s]}, {32*s}, {RX[0]}")
    def wread_addrs(RW, nct, tile0_s):
        a(f"""
        v_bfe_u32 v1, {LANE}, 2, 2            ; r
        v_lshrrev_b32 v2, 5, {LANE}           ; hh
        v_lshl_add_u32 v2, v2, 3, v1
        v_lshl_add_u32 v11, v2, 7, v11
        v_mul_u32_u24 v2, 12288, v10
        v_add_u32 v11, v2, v11
        v_lshrrev_b32 v1, 1, v1
        v_lshlrev_b32 v2, 1, v10
        v_xor_b32 v1, v1, v2                  ; 2region ^ (r>>1)
        """)
        for c in range(nct):
            a(f"""
            s_add_u32 s3, {tile0_s}, {c}
            s_and_b32 s4, s3, 3
            s_lshr_b32 s3, s3, 2
            s_lshl_b32 s3, s3, 12
            v_xor_b32 v2, s4, v1
            v_lshl_add_u32 v2, v2, 5, v11
            v_add_u32 {RW[0][c]}, s3, v2
            v_add_u32 {RW[1][c]}, {2*WSLOT}, {RW[0][c]}
            """)
    def poll(tag):
        a(f"""
        v_mov_b32 v252, 0
{tag}_POLL:
        buffer_load_dword v253, v252, {sDBG}, 0 offen sc1
        s_waitcnt vmcnt(0)
        v_readfirstlane_b32 s3, v253
        s_cmp_ge_u32 s3, {NPROD}
        s_cbranch_scc1 {tag}_POLLED
        s_sleep 2
        s_branch {tag}_POLL
{tag}_POLLED:
        """)
    def negm_frag(dst, st):
        a(f"""
        v_cmp_gt_u32 vcc, 32, {LANE}
        v_cndmask_b32 v{dst}, 0, v{st}, vcc
        v_and_b32 v{dst+1}, 0xffff, v{dst}
        """)

    RWc = [['v230','v231','v232'], ['v233','v234','v235']]; RXc = ['v236','v237','v238','v239']
    a(f"""
    s_and_b32 {T0}, {WAVE}, 1
    s_lshr_b32 {T1}, {WAVE}, 1
    s_lshl_b32 {T2}, {T0}, 6
    s_mul_i32 {T3}, {T1}, 3
    v_bfe_u32 v10, {LANE}, 4, 1           ; region = g16
    v_and_b32 v11, 1, {LANE}
    v_lshlrev_b32 v11, 4, v11
    v_bfe_u32 v12, {LANE}, 1, 1
    v_lshl_add_u32 v11, v12, 3, v11
    """)
    wread_addrs(RWc, 3, T3); xread_addrs(RXc, T2)
    mainloop("K1C", 2, 3, 0, RWc, RXc, 100, 120)
    if stamp: a("s_memtime s[92:93]")
    poll("K1C")
    a(f"""
    v_and_b32 v96, 31, {LANE}
    s_lshl_b32 s3, {RB}, 7
    s_add_u32 s3, s3, {T2}
    v_add_u32 v97, s3, v96
    v_lshlrev_b32 v97, 3, v97
    s_mov_b32 s4, {OFF_ST}
    buffer_load_dwordx2 v[100:101], v97, {sWS}, s4 offen sc1
    buffer_load_dwordx2 v[102:103], v97, {sWS}, s4 offen offset:256 sc1
    v_and_b32 v98, 3, v96
    v_bfe_u32 v99, v96, 2, 1
    v_lshl_add_u32 v98, v99, 3, v98
    v_bfe_u32 v99, v96, 3, 1
    v_lshl_add_u32 v98, v99, 2, v98
    v_lshrrev_b32 v99, 4, v96
    v_mul_u32_u24 v99, 1728, v99
    v_add_u32 v98, v99, v98
    s_lshl_b32 s3, {T3}, 4
    s_add_u32 s3, s3, {PBASE}
    s_add_u32 s3, s3, 1920
    v_add_u32 v98, s3, v98
    v_lshlrev_b32 v98, 3, v98
    s_mov_b32 s4, {OFF_CS}
    buffer_load_dwordx2 v[104:105], v98, {sWS}, s4 offen sc1
    buffer_load_dwordx2 v[106:107], v98, {sWS}, s4 offen offset:128 sc1
    buffer_load_dwordx2 v[108:109], v98, {sWS}, s4 offen offset:256 sc1
    v_and_b32 v98, 15, {LANE}
    v_lshlrev_b32 v98, 4, v98
    v_bfe_u32 v99, {LANE}, 4, 1
    v_lshl_add_u32 v98, v99, 10, v98
    v_lshrrev_b32 v99, 5, {LANE}
    v_lshl_add_u32 v98, v99, 8, v98
    s_lshl_b32 s3, {RB}, 1
    s_add_u32 s3, s3, {T0}
    s_mul_i32 s5, s3, {HO_RB}
    s_mul_i32 s6, {COL}, 12
    s_add_u32 s6, s6, {T3}
    s_waitcnt vmcnt(0)
    """)
    negm_frag(110, 100); negm_frag(112, 102)
    for c in range(3):
        for t in range(2):
            d = 16*(t*3 + c)
            a(f"v_mfma_f32_32x32x8_bf16 v[{d}:{d+15}], v[{104+2*c}:{105+2*c}], v[{110+2*t}:{111+2*t}], v[{d}:{d+15}]")
    for t in range(2):
        sd = 101 + 2*t; k = 114 + 4*t
        a(f"""
        v_rcp_f32 v99, v{sd}
        v_mul_f32 v{k+2}, v{sd}, v{sd}
        v_mul_f32 v{k+1}, {f2u(C0)}, v99
        v_mul_f32 v99, v99, v99
        v_mul_f32 v99, {f2u(0.044715)}, v99
        v_mul_f32 v{k}, v99, v{k+1}
        """)
    for c in range(3):
        a(f"""
        s_add_u32 s3, s6, {c}
        s_lshr_b32 s4, s3, 1
        s_lshl_b32 s4, s4, 12
        s_and_b32 s3, s3, 1
        s_lshl_b32 s3, s3, 9
        s_add_u32 s4, s4, s3
        s_add_u32 s{74+c}, s4, s5
        """)
    nst = 0
    for c in range(3):
        for t in range(2):
            d = 16*(t*3 + c); k = 114 + 4*t
            tb = 124 + (nst & 1)*12
            P = lambda r: f"v[{r}:{r+1}]"
            for p in range(4): a(f"v_pk_mul_f32 {P(tb+2*p)}, {P(d+2*p)}, {P(d+2*p)}")
            for p in range(4): a(f"v_pk_fma_f32 {P(tb+2*p)}, {P(tb+2*p)}, {P(k)}, {P(k)} op_sel:[0,0,1] op_sel_hi:[1,0,1]")
            for p in range(4): a(f"v_pk_mul_f32 {P(tb+2*p)}, {P(tb+2*p)}, {P(d+2*p)}")
            for p in range(8): a(f"v_exp_f32 v{tb+p}, v{tb+p}")
            for p in range(4): a(f"v_pk_mul_f32 {P(d+2*p)}, {P(d+2*p)}, {P(d+8+2*p)}")
            for p in range(4): a(f"v_pk_fma_f32 {P(tb+2*p)}, {P(tb+2*p)}, {P(k+2)}, {P(k+2)} op_sel:[0,0,0] op_sel_hi:[1,0,0]")
            for p in range(8): a(f"v_rcp_f32 v{tb+p}, v{tb+p}")
            for p in range(4): a(f"v_pk_mul_f32 {P(d+2*p)}, {P(d+2*p)}, {P(tb+2*p)}")
            for p in range(4): a(f"v_cvt_pk_bf16_f32 v{tb+8+p}, v{d+2*p}, v{d+2*p+1}")
            a(f"buffer_store_dwordx4 v[{tb+8}:{tb+11}], v98, {sWS}, s{74+c} offen offset:{t*2048}")
            nst += 1
    a("s_branch K1_FIN")

    a.label("K1_QKVLOOP")
    RWq = [['v226','v227','v228','v229','v230'], ['v231','v232','v233','v234','v235']]; RXq = ['v236','v237','v238','v239']
    srd(a, sA, pPHI, 25600)
    a(f"""
    s_mul_i32 s3, {ROLE}, 6400
    s_mul_i32 s4, {COL}, s3
    s_lshl_b32 s5, {WAVE}, 11
    v_lshl_add_u32 v1, {LANE}, 4, s5
    v_add_u32 v2, 1024, v1
    v_mov_b32 v3, 0x40000000
    v_cmp_gt_u32 vcc, s3, v1
    v_cndmask_b32 v1, v3, v1, vcc
    v_cmp_gt_u32 vcc, s3, v2
    v_cndmask_b32 v2, v3, v2, vcc
    s_add_u32 m0, s5, {PHIB}
    buffer_load_dwordx4 v1, {sA}, s4 offen lds
    s_add_u32 m0, s5, {PHIB+1024}
    buffer_load_dwordx4 v2, {sA}, s4 offen lds
    s_and_b32 {T0}, {WAVE}, 3
    s_lshr_b32 {T1}, {WAVE}, 2
    s_lshl_b32 {T2}, {T0}, 5
    s_mul_i32 {T3}, {T1}, 5
    v_and_b32 v10, 1, {LANE}
    v_bfe_u32 v11, {LANE}, 1, 1
    v_bfe_u32 v12, {LANE}, 4, 1
    v_lshl_add_u32 v11, v12, 1, v11
    v_lshlrev_b32 v11, 3, v11             ; (cc>>1)*8
    """)
    wread_addrs(RWq, 5, T3); xread_addrs(RXq, T2)
    mainloop("K1Q", 1, 5, 0, RWq, RXq, 100, 124)
    if stamp: a("s_memtime s[92:93]")
    poll("K1Q")
    a(f"""
    v_and_b32 v96, 31, {LANE}
    s_lshl_b32 s3, {RB}, 7
    s_add_u32 s3, s3, {T2}
    v_add_u32 v97, s3, v96
    v_lshlrev_b32 v97, 3, v97
    s_mov_b32 s4, {OFF_ST}
    buffer_load_dwordx2 v[100:101], v97, {sWS}, s4 offen sc1
    v_and_b32 v90, 3, v96
    v_bfe_u32 v91, v96, 2, 1              ; region
    v_mad_u32_u24 v90, v91, {PREG}, v90
    v_add_u32 v90, {PBASE}, v90
    v_lshrrev_b32 v91, 3, v96             ; cc>>1
    s_lshl_b32 s3, {T3}, 2
    v_add_u32 v91, s3, v91
    s_mov_b32 s4, {OFF_CS}
    """)
    for c in range(5):
        a(f"""
        v_add_u32 v92, {4*c}, v91
        v_mul_u32_u24 v93, 26, v92
        v_lshrrev_b32 v93, 8, v93
        v_mul_u32_u24 v94, 10, v93
        v_sub_u32 v92, v92, v94
        v_lshl_add_u32 v92, v92, 2, v90
        v_and_b32 v94, 1, v93
        v_mad_u32_u24 v92, v94, {PA}, v92
        v_lshrrev_b32 v94, 1, v93
        v_mad_u32_u24 v92, v94, {PB}, v92
        v_lshlrev_b32 v92, 3, v92
        buffer_load_dwordx2 v[{104+2*c}:{105+2*c}], v92, {sWS}, s4 offen sc1
        """)
    ZOFF = PHIB + 12800
    a(f"""
    v_bfe_u32 v90, {LANE}, 2, 2           ; r
    v_mul_u32_u24 v90, 40, v90
    v_bfe_u32 v91, {LANE}, 1, 1
    v_bfe_u32 v92, {LANE}, 4, 1
    v_lshl_add_u32 v91, v92, 1, v91
    v_and_b32 v92, 1, {LANE}              ; H
    v_lshrrev_b32 v93, 5, {LANE}          ; hh
    s_mul_i32 s3, {ROLE}, 1600
    s_mul_i32 s4, s3, {T1}
    s_add_u32 s4, s4, {PHIB}
    s_lshl_b32 s3, s3, 1
    v_mad_u32_u24 v90, v92, s3, v90
    v_add_u32 v90, s4, v90
    v_lshl_add_u32 v94, v91, 3, v90
    v_mov_b32 v95, {ZOFF}
    v_cmp_eq_u32 vcc, v92, v93
    v_cndmask_b32 v248, v95, v94, vcc
    v_add_u32 v94, 32, v90
    v_cndmask_b32 v94, v95, v94, vcc
    v_cmp_eq_u32 vcc, 0, v91
    v_cndmask_b32 v249, v95, v94, vcc
    s_waitcnt vmcnt(0)
    """)
    negm_frag(102, 100)
    for c in range(5):
        a(f"v_mfma_f32_32x32x8_bf16 v[{16*c}:{16*c+15}], v[{104+2*c}:{105+2*c}], v[102:103], v[{16*c}:{16*c+15}]")
    a("v_rcp_f32 v246, v101")
    def phi_frags(F, pair):
        for T in range(2):
            for q in range(5):
                a(f"ds_read_b64_tr_b16 v[{F+10*T+2*q}:{F+10*T+2*q+1}], v{248+T} offset:{pair*800 + 4*q*40}")
    def phi_mfma(D, F, B):
        for T in range(2):
            d = D + 16*T; f = F + 10*T
            a(f"v_mfma_f32_32x32x16_bf16 v[{d}:{d+15}], v[{f}:{f+3}], v[{B}:{B+3}], 0")
            a(f"v_mfma_f32_32x32x16_bf16 v[{d}:{d+15}], v[{f+4}:{f+7}], v[{B+4}:{B+7}], v[{d}:{d+15}]")
            a(f"v_mfma_f32_32x32x8_bf16 v[{d}:{d+15}], v[{f+8}:{f+9}], v[{B+8}:{B+9}], v[{d}:{d+15}]")
    P = lambda r: f"v[{r}:{r+1}]"
    a(f"""
    s_cmp_eq_u32 {ROLE}, 2
    s_cbranch_scc1 K1_QEPI
    """)
    phi_frags(120, 0); phi_frags(140, 1)
    for p in range(20): a(f"v_cvt_pk_bf16_f32 v{80+p}, v{2*p}, v{2*p+1}")
    a("s_waitcnt lgkmcnt(0)")
    phi_mfma(160, 120, 80); phi_mfma(192, 140, 90)
    a(f"""
    v_mul_f32 v244, {f2u(LOG2E)}, v246
    v_sub_f32 v245, 0, v244               ; (c, -c)
    v_lshrrev_b32 v93, 5, {LANE}
    v_mul_u32_u24 v93, {4*18432}, v93
    v_and_b32 v94, 31, {LANE}
    v_add_u32 v94, {T2}, v94
    v_mul_u32_u24 v94, 144, v94
    v_add_u32 v93, v93, v94
    s_mul_i32 s3, {T1}, {2*18432}
    v_add_u32 v243, s3, v93
    s_barrier
    """)
    for i in range(2):
        L = 160 + 32*i; O = 100
        V = 40 + 20*i
        for p in range(10): a(f"v_pk_mul_f32 {P(V+2*p)}, {P(V+2*p)}, {P(246)} op_sel_hi:[1,0]")
        a(f"v_max3_f32 v90, v{L}, v{L+1}, v{L+2}\nv_min3_f32 v91, v{L}, v{L+1}, v{L+2}")
        for p in range(3, 19, 2):
            a(f"v_max3_f32 v90, v90, v{L+p}, v{L+p+1}\nv_min3_f32 v91, v91, v{L+p}, v{L+p+1}")
        a(f"v_max_f32 v90, v90, v{L+19}\nv_min_f32 v91, v91, v{L+19}")
        a(f"v_mul_f32 v90, v245, v90\nv_mul_f32 v91, v244, v91")
        for p in range(10): a(f"v_cvt_pk_bf16_f32 v{O+20+p}, v{V+2*p}, v{V+2*p+1}")
        for p in range(10):
            a(f"v_pk_fma_f32 {P(2*p)}, {P(L+2*p)}, {P(244)}, {P(90)} op_sel:[0,0,0] op_sel_hi:[1,0,0]")
            a(f"v_pk_fma_f32 {P(20+2*p)}, {P(L+2*p)}, {P(244)}, {P(90)} op_sel:[0,1,1] op_sel_hi:[1,1,1]")
        for p in range(40): a(f"v_exp_f32 v{p}, v{p}")
        a(f"v_pk_add_f32 {P(92)}, {P(0)}, {P(2)}\nv_pk_add_f32 {P(94)}, {P(20)}, {P(22)}")
        for p in range(2, 10):
            a(f"v_pk_add_f32 {P(92)}, {P(92)}, {P(2*p)}\nv_pk_add_f32 {P(94)}, {P(94)}, {P(20+2*p)}")
        a("v_add_f32 v92, v92, v93\nv_add_f32 v93, v94, v95\nv_rcp_f32 v92, v92\nv_rcp_f32 v93, v93")
        a(f"v_mov_b32 v{O+30}, 0x3f80\nv_mov_b32 v{O+31}, 0")
        for p in range(10):
            a(f"v_pk_mul_f32 {P(2*p)}, {P(2*p)}, {P(92)} op_sel:[0,0] op_sel_hi:[1,0]")
            a(f"v_pk_mul_f32 {P(20+2*p)}, {P(20+2*p)}, {P(92)} op_sel:[0,1] op_sel_hi:[1,1]")
        order = [0,1,2,3,8, 10,11,12,13,18, 4,5,6,7,9, 14,15,16,17,19]
        for n, p in enumerate(order): a(f"v_cvt_pk_bf16_f32 v{O+n}, v{2*p}, v{2*p+1}")
        for q in range(8): a(f"ds_write_b128 v243, v[{O+4*q}:{O+4*q+3}] offset:{i*18432 + 16*q}")
    a(f"""
    v_bfe_u32 v90, {LANE}, 2, 2           ; r
    v_lshrrev_b32 v91, 5, {LANE}          ; hh
    v_lshl_add_u32 v90, v91, 3, v90
    v_mul_u32_u24 v90, 144, v90
    v_and_b32 v92, 3, {LANE}
    v_bfe_u32 v93, {LANE}, 4, 1
    v_lshl_add_u32 v92, v93, 2, v92
    v_lshl_add_u32 v90, v92, 3, v90
    s_mul_i32 s3, {WAVE}, 18432
    v_add_u32 v90, s3, v90
    v_and_b32 v92, 31, {LANE}
    v_mul_u32_u24 v91, 24, v91
    v_add_u32 v91, v91, v92
    v_lshlrev_b32 v91, 4, v91
    v_mov_b32 v93, 0x40000000
    v_cmp_gt_u32 vcc, 24, v92
    v_cndmask_b32 v91, v93, v91, vcc
    s_lshl_b32 s3, {COL}, 3
    s_add_u32 s3, s3, {WAVE}
    s_lshl_b32 s3, s3, 4
    s_add_u32 s3, s3, {RB}
    s_mul_i32 s3, s3, 3840
    s_add_u32 s3, s3, {OFF_P}
    s_waitcnt lgkmcnt(0)
    s_barrier
    """)
    for s in range(8):
        F = 100 + 12*s
        for n, off in enumerate([0, 64, 80]):
            for i in range(2):
                a(f"ds_read_b64_tr_b16 v[{F+4*n+2*i}:{F+4*n+2*i+1}], v90 offset:{(16*s+4*i)*144 + off}")
        if s >= 1:
            G = 100 + 12*(s-1)
            a("s_waitcnt lgkmcnt(6)")
            c0 = "0" if s == 1 else "v[0:15]"; c1 = "0" if s == 1 else "v[16:31]"
            a(f"v_mfma_f32_32x32x16_bf16 v[0:15], v[{G}:{G+3}], v[{G+8}:{G+11}], {c0}")
            a(f"v_mfma_f32_32x32x16_bf16 v[16:31], v[{G+4}:{G+7}], v[{G+8}:{G+11}], {c1}")
    G = 100 + 84
    a("s_waitcnt lgkmcnt(0)")
    a(f"v_mfma_f32_32x32x16_bf16 v[0:15], v[{G}:{G+3}], v[{G+8}:{G+11}], v[0:15]")
    a(f"v_mfma_f32_32x32x16_bf16 v[16:31], v[{G+4}:{G+7}], v[{G+8}:{G+11}], v[16:31]")
    for g in range(5):
        a(f"buffer_store_dwordx4 v[{4*g}:{4*g+3}], v91, {sWS}, s3 offen offset:{g*768}")
    a("s_branch K1_FIN")

    a.label("K1_QEPI")
    phi_frags(120, 0); phi_frags(140, 1)
    for p in range(40): a(f"v_cvt_pk_bf16_f32 v{80+p}, v{2*p}, v{2*p+1}")
    a(f"""
    v_lshrrev_b32 v0, 5, {LANE}
    v_and_b32 v1, 31, {LANE}
    v_lshlrev_b32 v2, 19, v0              ; 8 heads * 65536
    v_lshl_add_u32 v244, v1, 4, v2
    v_lshlrev_b32 v2, 17, v0              ; 8 heads * 16384
    v_lshl_add_u32 v245, v1, 3, v2
    s_lshl_b32 s3, {COL}, 2
    s_add_u32 s3, s3, {T1}
    s_lshl_b32 s3, s3, 2
    s_lshl_b32 s3, s3, 6
    s_lshl_b32 s4, {RB}, 2
    s_add_u32 s4, s4, {T0}
    s_add_u32 s3, s3, s4
    s_lshl_b32 s5, s3, 10
    s_add_u32 s5, s5, {OFF_PQA}
    s_lshl_b32 s6, s3, 8
    s_add_u32 s6, s6, {OFF_PQC}
    s_waitcnt lgkmcnt(0)
    """)
    phi_mfma(160, 120, 80); phi_mfma(192, 140, 90)
    phi_frags(120, 2); phi_frags(140, 3)
    def qout(L, O):
        for p in range(10): a(f"v_pk_mul_f32 {P(L+2*p)}, {P(L+2*p)}, {P(246)} op_sel_hi:[1,0]")
        for p in range(10): a(f"v_cvt_pk_bf16_f32 v{O+p}, v{L+2*p}, v{L+2*p+1}")
        a(f"""
        buffer_store_dwordx4 v[{O}:{O+3}], v244, {sWS}, s5 offen
        buffer_store_dwordx4 v[{O+4}:{O+7}], v244, {sWS}, s5 offen offset:512
        buffer_store_dwordx2 v[{O+8}:{O+9}], v245, {sWS}, s6 offen
        s_add_u32 s5, s5, 65536
        s_add_u32 s6, s6, 16384
        """)
    a("s_waitcnt lgkmcnt(0)")
    phi_mfma(0, 120, 100); phi_mfma(32, 140, 110)
    qout(160, 64); qout(192, 224); qout(0, 64); qout(32, 224)
    a("s_branch K1_FIN")

    def colsum_loads(nl, base):
        a(f"""
        v_lshrrev_b32 v1, 3, {LANE}
        s_mul_i32 s3, {WAVE}, 80
        v_add_u32 v1, s3, v1
        v_mul_lo_u32 v1, v1, {WSTR}
        v_and_b32 v2, 7, {LANE}
        v_lshl_add_u32 v245, v2, 4, v1
        s_lshl_b32 s5, {WSTR}, 3
        """)
        for l in range(nl):
            a(f"""
            s_add_u32 s4, {T0}, {l}
            s_lshl_b32 s4, s4, 7
            s_cmp_gt_u32 {T1}, {l}
            s_cselect_b32 s26, s26, 0
            """)
            for i in range(10):
                r = base + 40*l + 4*i
                a(f"buffer_load_dwordx4 v[{r}:{r+3}], v245, {sA}, s4 offen\ns_add_u32 s4, s4, s5")
    def colsum_acc(nl, base, accb):
        a(f"s_mov_b32 s6, 0x00003f80\ns_mov_b32 s7, 0x3f800000")
        a(f"""
        v_lshlrev_b32 v246, 5, {LANE}
        s_lshl_b32 s3, {WAVE}, 11
        v_add_u32 v246, s3, v246
        """)
        for l in range(nl):
            A = accb + 8*l
            for r in range(8): a(f"v_mov_b32 v{A+r}, 0")
            for i in range(10):
                a(f"s_waitcnt vmcnt({10*(nl-1-l) + 9 - i})")
                r = base + 40*l + 4*i
                for q in range(4):
                    a(f"v_dot2c_f32_bf16 v{A+2*q}, s6, v{r+q}\nv_dot2c_f32_bf16 v{A+2*q+1}, s7, v{r+q}")
            a(f"ds_write_b128 v246, v[{A}:{A+3}] offset:{l*16384}\nds_write_b128 v246, v[{A+4}:{A+7}] offset:{l*16384+16}")
    def colsum_fin(tag, gl):
        a(f"""
        s_waitcnt lgkmcnt(0)
        s_barrier
        s_cmp_ge_u32 {WAVE}, {T1}
        s_cbranch_scc1 {tag}_CSDONE
        s_lshl_b32 s3, {WAVE}, 14
        v_lshl_add_u32 v1, {LANE}, 2, s3
        """)
        for e in range(32): a(f"ds_read2st64_b32 v[{10+2*e}:{11+2*e}], v1 offset0:{2*e} offset1:{2*e+1}")
        a("s_waitcnt lgkmcnt(0)")
        n = 32
        while n > 1:
            for e in range(n//2): a(f"v_pk_add_f32 {P(10+2*e)}, {P(10+2*e)}, {P(10+2*(e+n//2))}")
            n //= 2
        a(f"""
        v_add_f32 v10, v10, v11
        v_cvt_pk_bf16_f32 v2, v10, v10
        v_and_b32 v3, 0xffff0000, v2
        v_sub_f32 v10, v10, v3
        v_cvt_pk_bf16_f32 v4, v10, v10
        v_and_b32 v3, 0xffff0000, v4
        v_sub_f32 v10, v10, v3
        v_and_b32 v2, 0xffff, v2
        v_or_b32 v4, v2, v3
        v_mov_b32 v3, 0
        v_cvt_pk_bf16_f32 v5, v10, v3
        s_add_u32 s3, {gl}, {WAVE}
        s_lshl_b32 s3, s3, 9
        s_add_u32 s3, s3, {OFF_CS}
        v_lshlrev_b32 v1, 3, {LANE}
        buffer_store_dwordx2 v[4:5], v1, {sWS}, s3 offen sc0 sc1
{tag}_CSDONE:
        s_waitcnt vmcnt(0)
        s_barrier
        s_cmp_lg_u32 {WAVE}, 0
        s_cbranch_scc1 {tag}_SIG
        v_mov_b32 v1, 0
        v_mov_b32 v2, 1
        s_mov_b64 exec, 1
        buffer_atomic_add v2, v1, {sDBG}, 0 offen
        s_mov_b64 exec, -1
{tag}_SIG:
        """)
    a.label("K1_QAUX")
    a(f"""
    s_bfe_u32 {T0}, {PAR}, 0x80008
    s_bfe_u32 {T1}, {PAR}, 0x80010
    s_mov_b32 {WSTR}, 3840
    """)
    colsum_loads(1, 10); colsum_acc(1, 10, 160); colsum_fin("K1QA", T0)
    a("s_branch K1_GEMM")

    a.label("K1_SPARE")
    a(f"""
    s_bfe_u32 {T2}, {PAR}, 0x80008
    s_bfe_u32 {T1}, {PAR}, 0x80010
    s_mov_b32 {WSTR}, 3456
    s_cmp_lt_u32 {T2}, 57
    s_cselect_b32 s24, {lo(pG)}, {lo(pU)}
    s_cselect_b32 s25, {hi(pG)}, {hi(pU)}
    s_cselect_b32 s3, 30, 57
    s_mov_b32 s26, {640*3456}
    s_sub_u32 {T0}, {T2}, s3
    ; x rows
    v_lshrrev_b32 v1, 3, {LANE}
    s_lshl_b32 s3, {RB}, 7
    s_lshl_b32 s4, {WAVE}, 4
    s_add_u32 s3, s3, s4
    v_add_u32 v247, s3, v1
    v_mul_u32_u24 v1, 1280, v247
    v_and_b32 v2, 7, {LANE}
    v_lshl_add_u32 v244, v2, 4, v1
    s_mov_b32 s4, {8*1280}
    """)
    for h in range(2):
        for i in range(10):
            r = 164 + 40*h + 4*i
            a(f"buffer_load_dwordx4 v[{r}:{r+3}], v244, {sX}, {'s4' if h else '0'} offen offset:{128*i}")
    colsum_loads(4, 4)
    a("s_mov_b32 s6, 0x3f803f80")
    for h in range(2):
        S, Q = ('v248', 'v249') if h == 0 else ('v251', 'v252')
        a(f"v_mov_b32 {S}, 0\nv_mov_b32 {Q}, 0")
        for i in range(10):
            a(f"s_waitcnt vmcnt({40 + 10*(1-h) + 9 - i})")
            r = 164 + 40*h + 4*i
            for q in range(4): a(f"v_dot2c_f32_bf16 {S}, s6, v{r+q}\nv_dot2c_f32_bf16 {Q}, v{r+q}, v{r+q}")
    for h in range(2):
        S, Q = ('v248', 'v249') if h == 0 else ('v251', 'v252')
        for m in ["quad_perm:[1,0,3,2]", "quad_perm:[2,3,0,1]", "row_half_mirror"]:
            a(f"v_add_f32_dpp {S}, {S}, {S} {m} row_mask:0xf bank_mask:0xf\nv_add_f32_dpp {Q}, {Q}, {Q} {m} row_mask:0xf bank_mask:0xf")
        o = 164 + 2*h
        a(f"""
        v_mul_f32 {S}, {f2u(1/640)}, {S}
        v_mul_f32 v1, {S}, {S}
        v_mul_f32 {Q}, {f2u(1/640)}, {Q}
        v_sub_f32 {Q}, {Q}, v1
        v_max_f32 {Q}, 0, {Q}
        v_sub_f32 {S}, 0, {S}
        v_cvt_pk_bf16_f32 v{o}, {S}, {S}
        v_cvt_pk_bf16_f32 v1, {Q}, {Q}
        v_and_b32 v1, 0xffff0000, v1
        v_add_f32 v1, {f2u(1e-5)}, v1
        v_cvt_pk_bf16_f32 v1, v1, v1
        v_and_b32 v1, 0xffff0000, v1
        v_sqrt_f32 v1, v1
        v_cvt_pk_bf16_f32 v1, v1, v1
        v_and_b32 v{o+1}, 0xffff0000, v1
        """)
    colsum_acc(4, 4, 172)
    a(f"""
    v_lshlrev_b32 v1, 3, v247
    s_mov_b32 s4, {OFF_ST}
    buffer_store_dwordx2 v[164:165], v1, {sWS}, s4 offen sc0 sc1
    buffer_store_dwordx2 v[166:167], v1, {sWS}, s4 offen offset:64 sc0 sc1
    """)
    colsum_fin("K1S", T2)
    a(f"""
    s_lshl_b32 {T0}, {RB}, 3
    s_add_u32 {T0}, {T0}, {WAVE}
    v_lshrrev_b32 v1, 3, {LANE}           ; row8
    v_and_b32 v2, 7, {LANE}
    v_lshlrev_b32 v2, 4, v2
    v_mul_u32_u24 v3, 1280, v1
    v_add_u32 v240, v3, v2
    v_lshrrev_b32 v3, 2, v1
    v_mul_u32_u24 v3, {16*1280}, v3
    v_add_u32 v241, v240, v3
    v_lshrrev_b32 v1, 4, {LANE}
    v_bfe_u32 v2, {LANE}, 2, 2
    v_lshl_add_u32 v1, v1, 3, v2
    v_and_b32 v2, 3, {LANE}
    v_lshlrev_b32 v2, 3, v2
    v_lshl_add_u32 v1, v1, 7, v2
    s_lshl_b32 {MW}, {WAVE}, 12
    s_add_u32 {MW}, {MW}, 65536
    v_add_u32 v242, {MW}, v1
    v_lshlrev_b32 v243, 4, {LANE}
K1_RL:
    s_cmp_ge_u32 {T0}, 740
    s_cbranch_scc1 K1_FIN
    s_mul_i32 {T1}, {T0}, 6554
    s_lshr_b32 {T1}, {T1}, 16             ; ks
    s_mul_i32 s3, {T1}, 10
    s_sub_u32 {T2}, {T0}, s3              ; line
    s_lshl_b32 {T3}, {T2}, 7
    s_cmp_ge_u32 {T1}, 54
    s_cbranch_scc1 K1_RLWO
    """)
    srd(a, sA, pD, 1728*1280)
    a(f"""
    s_mul_i32 s3, {T1}, {32*1280}
    s_add_u32 s3, s3, {T3}
    """)
    for g in range(4):
        a(f"s_add_u32 m0, {MW}, {g*1024}\nbuffer_load_dwordx4 v240, {sA}, s3 offen lds\ns_add_u32 s3, s3, {8*1280}")
    a("s_branch K1_RLGO")
    a.label("K1_RLWO")
    srd(a, sA, pWO, 640*1280)
    for g in range(4):
        a(f"""
        s_sub_u32 s3, {T1}, 54
        s_lshl_b32 s3, s3, 2
        s_add_u32 s3, s3, {g}                 ; octet
        s_mul_i32 s4, s3, 205
        s_lshr_b32 s4, s4, 10                 ; pair = o/5
        s_mul_i32 s5, s4, 5
        s_sub_u32 s5, s3, s5                  ; w
        s_mul_i32 s4, s4, 40
        s_lshr_b32 s6, s5, 1
        s_mul_i32 s6, s6, 20
        s_and_b32 s7, s5, 1
        s_lshl_b32 s7, s7, 3
        s_add_u32 s6, s6, s7
        s_cmp_eq_u32 s5, 4
        s_cselect_b32 s6, 16, s6
        s_cselect_b64 vcc, -1, 0
        s_add_u32 s4, s4, s6
        s_mul_i32 s4, s4, 1280
        s_add_u32 s4, s4, {T3}
        v_cndmask_b32 v1, v240, v241, vcc
        s_add_u32 m0, {MW}, {g*1024}
        buffer_load_dwordx4 v1, {sA}, s4 offen lds
        """)
    a.label("K1_RLGO")
    a("s_waitcnt vmcnt(0)")
    for m in range(4):
        for i in range(2):
            a(f"ds_read_b64_tr_b16 v[{8+4*m+2*i}:{9+4*m+2*i}], v242 offset:{i*512 + m*32}")
    a(f"s_mul_i32 s7, {T1}, 5120\ns_add_u32 s7, s7, {OFF_W2}")
    for m in range(4):
        a(f"""
        s_lshl_b32 s3, {T2}, 2
        s_add_u32 s3, s3, {m}
        s_mul_i32 s4, s3, 52
        s_lshr_b32 s4, s4, 8                  ; ct
        s_mul_i32 s5, s4, 5
        s_sub_u32 s5, s3, s5
        s_mul_i32 s4, s4, {W2_CT}
        s_lshl_b32 s5, s5, 10
        s_add_u32 s4, s4, s5
        s_add_u32 s4, s4, s7
        s_waitcnt lgkmcnt({6-2*m})
        buffer_store_dwordx4 v[{8+4*m}:{11+4*m}], v243, {sWS}, s4 offen
        """)
    a(f"""
    s_add_u32 {T0}, {T0}, 128
    s_branch K1_RL
    """)
    a.label("K1_FIN")
    if stamp:
        a(f"""
        s_waitcnt vmcnt(0)
        s_memtime s[94:95]
        s_waitcnt lgkmcnt(0)
        s_sub_u32 s92, s92, s90
        s_sub_u32 s94, s94, s90
        v_mov_b32 v4, s92
        v_mov_b32 v5, s94
        s_lshl_b32 s3, s2, 3
        s_add_u32 s3, s3, {WAVE}
        s_lshl_b32 s3, s3, 3
        s_add_u32 s3, s3, {WS_SIZE - 65536}
        v_mov_b32 v1, 0
        buffer_store_dwordx2 v[4:5], v1, {sWS}, s3 offen
        """)
    a.label("K1_END")
    a("s_endpgm")
    a(".p2align 4\n.type K1_TAB,@object")
    a.label("K1_TAB")
    for e in k1_table(phase_fn): a(".long %d, %d, %d, %d" % e)
```

```python
from asmlib import Asm
from layout import *
from k1 import f2u, LOG2E, srd, lo, hi
sH='s[8:11]'; sW='s[12:15]'; sWS='s[16:19]'; sDBG='s[20:23]'; sX='s[24:27]'; sO='s[28:31]'
WAVE='s32'; RB='s33'; CT='s34'; HEAD='s35'; TB='s36'; KH='s37'; KWW='s38'; KH0='s39'
pX='s[52:53]'; pOUT='s[56:57]'; pDBG='s[58:59]'; pWSp='s[60:61]'
LANE='v250'; V16='v251'; V16B='v252'
P = lambda r: f"v[{r}:{r+1}]"

def gen_k2(a, name="k2_kernel", stamp=False):
    a(f".globl {name}\n.p2align 8\n.type {name},@function")
    a.label(name)
    a(f"""
    s_cmp_ge_u32 s2, 256
    s_cbranch_scc1 K2_END
    s_load_dwordx2 s[52:53], s[0:1], 0
    s_load_dwordx4 s[56:59], s[0:1], 64
    s_load_dwordx2 s[60:61], s[0:1], 80
    """)
    if stamp: a("s_memtime s[90:91]")
    a(f"""
    v_and_b32 {LANE}, 63, v0
    v_lshrrev_b32 v1, 6, v0
    v_readfirstlane_b32 {WAVE}, v1
    s_and_b32 s3, s2, 7                   ; xcd
    s_lshr_b32 s4, s2, 3                  ; j
    s_lshr_b32 s5, s3, 1
    s_lshl_b32 s5, s5, 3
    s_and_b32 s6, s4, 7
    s_add_u32 {RB}, s5, s6
    s_and_b32 s5, s3, 1
    s_lshl_b32 s5, s5, 2
    s_lshr_b32 s6, s4, 3
    s_add_u32 {CT}, s5, s6
    s_lshl_b32 s5, s3, 2
    s_and_b32 s6, s4, 3
    s_add_u32 {HEAD}, s5, s6
    s_lshr_b32 {TB}, s4, 2
    v_lshlrev_b32 {V16}, 4, {LANE}
    v_add_u32 {V16B}, 4096, {V16}
    v_and_b32 v240, 31, {LANE}            ; n
    v_lshrrev_b32 v241, 5, {LANE}         ; hh
    s_lshl_b32 s3, {WAVE}, 5
    v_add_u32 v242, s3, v240              ; item
    v_mul_u32_u24 v1, {8*3840}, v241
    v_lshl_add_u32 v1, v242, 4, v1
    v_mov_b32 v2, 0x40000000
    v_cmp_gt_u32 vcc, 240, v242
    v_cndmask_b32 v243, v2, v1, vcc
    s_mul_i32 s40, {HEAD}, {16*3840}
    s_add_u32 s40, s40, {OFF_P}
    s_lshl_b32 s3, {TB}, 3
    s_add_u32 s41, s3, {WAVE}             ; T32
    s_lshl_b32 s3, {HEAD}, 6
    s_add_u32 s3, s3, s41
    s_lshl_b32 s42, s3, 10
    s_add_u32 s42, s42, {OFF_PQA}
    s_lshl_b32 s43, s3, 8
    s_add_u32 s43, s43, {OFF_PQC}
    v_lshlrev_b32 v1, 3, v240
    v_lshl_add_u32 v244, v241, 2, v1
    s_mul_i32 s3, {WAVE}, 9
    s_mul_i32 s4, {WAVE}, 10
    s_sub_u32 s4, s4, 6
    s_cmp_ge_u32 {WAVE}, 6
    s_cselect_b32 s3, s4, s3              ; ks0
    s_mul_i32 {KH}, {RB}, {HO_RB}
    s_lshl_b32 s4, s3, 12
    s_add_u32 {KH}, {KH}, s4
    s_mov_b32 {KH0}, {KH}
    s_mul_i32 {KWW}, {CT}, {W2_CT}
    s_mul_i32 s4, s3, 5120
    s_add_u32 {KWW}, {KWW}, s4
    s_add_u32 {KWW}, {KWW}, {OFF_W2}
    s_waitcnt lgkmcnt(0)
    """)
    srd(a, sH, pWSp, WS_SIZE); srd(a, sW, pWSp, WS_SIZE); srd(a, sWS, pWSp, WS_SIZE); srd(a, sDBG, pDBG, 256)
    srd(a, sX, pX, 2621440); srd(a, sO, pOUT, 2621440)
    a(f"""
    s_cmp_ge_u32 {WAVE}, 6
    s_cselect_b32 s10, 0, s10
    buffer_load_dwordx4 v[32:35], {V16}, {sWS}, s42 offen
    buffer_load_dword v36, v244, {sWS}, s43 offen
    """)
    for i in range(8):
        a(f"buffer_load_dwordx4 v[{4*i}:{4*i+3}], v243, {sWS}, s40 offen\ns_add_u32 s40, s40, 3840")
    def hloads(d, kh=KH):
        B = 80 + 36*d
        for t in range(4): a(f"buffer_load_dwordx4 v[{B+20+4*t}:{B+23+4*t}], {V16}, {sH}, {kh} offen offset:{1024*t} sc1")
    def loads(d):
        B = 80 + 36*d
        for mt in range(4): a(f"buffer_load_dwordx4 v[{B+4*mt}:{B+4*mt+3}], {V16}, {sW}, {KWW} offen offset:{1024*mt}")
        a(f"buffer_load_dwordx4 v[{B+16}:{B+19}], {V16B}, {sW}, {KWW} offen")
        hloads(d)
        a(f"s_add_u32 {KH}, {KH}, 4096\ns_add_u32 {KWW}, {KWW}, 5120")
    loads(0)
    a(f"""
    v_mul_u32_u24 v224, 171, v242
    v_lshrrev_b32 v224, 12, v224          ; quad
    v_mul_u32_u24 v225, 24, v224
    v_sub_u32 v225, v242, v225            ; d
    v_mul_u32_u24 v225, 80, v225
    v_cmp_lt_u32 vcc, 4, v224
    v_cndmask_b32 v226, 0, 1, vcc         ; H
    v_mul_u32_u24 v227, 5, v226
    v_sub_u32 v224, v224, v227            ; qq
    v_lshrrev_b32 v227, 1, v224
    v_lshlrev_b32 v227, 5, v227
    v_and_b32 v228, 1, v224
    v_lshl_add_u32 v227, v228, 3, v227
    v_cmp_eq_u32 vcc, 4, v224
    v_cndmask_b32 v228, 4, 3, vcc
    v_lshlrev_b32 v226, v228, v226
    v_add3_u32 v245, v225, v226, v227
    v_mov_b32 v224, 4000
    v_cmp_gt_u32 vcc, 240, v242
    v_cndmask_b32 v245, v224, v245, vcc
    v_bfe_u32 v224, v240, 2, 1            ; Ho
    v_and_b32 v225, 3, v240
    v_lshrrev_b32 v226, 3, v240
    v_lshl_add_u32 v225, v226, 2, v225    ; g
    v_lshl_add_u32 v227, v224, 3, v225    ; 8Ho+g
    v_add_u32 v228, 8, v225
    v_cmp_lt_u32 vcc, 7, v225
    v_cndmask_b32 v227, v227, v228, vcc
    v_min_u32 v227, 20, v227
    v_mul_u32_u24 v227, 80, v227
    v_lshl_add_u32 v246, v241, 4, v227
    v_lshl_add_u32 v247, v241, 3, v227
    s_lshr_b32 s3, {HEAD}, 1
    s_mul_i32 s3, s3, 5
    s_and_b32 s4, {HEAD}, 1
    s_lshl_b32 s5, s4, 1
    s_add_u32 s5, s5, s3
    v_add_u32 v224, s5, v241              ; octet
    v_lshrrev_b32 v225, 2, v224
    v_and_b32 v224, 3, v224
    v_lshlrev_b32 v224, 8, v224
    v_lshl_add_u32 v224, v225, 12, v224
    v_and_b32 v225, 15, v240
    v_lshlrev_b32 v225, 4, v225
    v_lshrrev_b32 v226, 4, v240
    v_lshl_add_u32 v225, v226, 10, v225
    v_add_u32 v248, v224, v225
    s_add_u32 s3, s3, 4
    s_lshr_b32 s5, s3, 2
    s_lshl_b32 s5, s5, 12
    s_and_b32 s3, s3, 3
    s_lshl_b32 s3, s3, 8
    s_add_u32 s3, s3, s5
    s_lshl_b32 s4, s4, 3
    s_add_u32 s3, s3, s4
    v_add_u32 v225, s3, v225
    v_mov_b32 v224, 0x40000000
    v_cmp_gt_u32 vcc, 32, {LANE}
    v_cndmask_b32 v249, v224, v225, vcc
    s_lshr_b32 s3, s41, 1
    s_mul_i32 s44, s3, {HO_RB}
    s_and_b32 s3, s41, 1
    s_lshl_b32 s3, s3, 11
    s_add_u32 s44, s44, s3
    s_add_u32 s44, s44, {54*4096}
    s_waitcnt vmcnt(17)
    """)
    for p in range(5):
        a(f"v_lshlrev_b32 v{40+2*p}, 16, v{32+p}\nv_and_b32 v{41+2*p}, 0xffff0000, v{32+p}")
    a("v_max3_f32 v224, v40, v41, v42\nv_min3_f32 v225, v40, v41, v42")
    for p in range(3, 9, 2): a(f"v_max3_f32 v224, v224, v{40+p}, v{41+p}\nv_min3_f32 v225, v225, v{40+p}, v{41+p}")
    a(f"""
    v_max_f32 v224, v224, v49
    v_min_f32 v225, v225, v49
    v_mov_b32 v226, v224
    v_mov_b32 v227, v225
    v_permlane32_swap_b32 v224, v226
    v_permlane32_swap_b32 v225, v227
    v_max_f32 v224, v224, v226
    v_min_f32 v225, v225, v227
    v_mov_b32 v228, {f2u(LOG2E)}
    v_mov_b32 v229, {f2u(-LOG2E)}
    v_mul_f32 v224, v229, v224
    v_mul_f32 v225, v228, v225
    """)
    for p in range(5):
        a(f"v_pk_fma_f32 {P(50+2*p)}, {P(40+2*p)}, {P(228)}, {P(224)} op_sel:[0,0,0] op_sel_hi:[1,0,0]")
        a(f"v_pk_fma_f32 {P(60+2*p)}, {P(40+2*p)}, {P(228)}, {P(224)} op_sel:[0,1,1] op_sel_hi:[1,1,1]")
    for p in range(20): a(f"v_exp_f32 v{50+p}, v{50+p}")
    a("s_waitcnt vmcnt(9)")
    for n in (4, 2, 1):
        for i in range(n):
            for q in range(2): a(f"v_pk_add_f32 {P(4*i+2*q)}, {P(4*i+2*q)}, {P(4*(i+n)+2*q)}")
    for q in range(4): a(f"v_mov_b32 v{4+q}, v{q}")
    for q in range(4): a(f"v_permlane32_swap_b32 v{q}, v{4+q}")
    a(f"""
    v_pk_add_f32 v[0:1], v[0:1], v[4:5]
    v_pk_add_f32 v[2:3], v[2:3], v[6:7]
    v_cvt_pk_bf16_f32 v0, v0, v1
    v_cvt_pk_bf16_f32 v1, v2, v3
    ds_write_b64 v245, v[0:1]
    """)
    loads(1)
    a(f"v_pk_add_f32 {P(224)}, {P(50)}, {P(52)}\nv_pk_add_f32 {P(226)}, {P(60)}, {P(62)}")
    for p in range(2, 5): a(f"v_pk_add_f32 {P(224)}, {P(224)}, {P(50+2*p)}\nv_pk_add_f32 {P(226)}, {P(226)}, {P(60+2*p)}")
    a(f"""
    v_add_f32 v224, v224, v225
    v_add_f32 v225, v226, v227
    v_mov_b32 v226, v224
    v_mov_b32 v227, v225
    v_permlane32_swap_b32 v224, v226
    v_permlane32_swap_b32 v225, v227
    v_add_f32 v224, v224, v226
    v_add_f32 v225, v225, v227
    v_rcp_f32 v224, v224
    v_rcp_f32 v225, v225
    s_waitcnt lgkmcnt(0)
    s_barrier
    ds_read_b128 v[0:3], v246
    ds_read_b128 v[4:7], v246 offset:32
    ds_read_b64 v[8:9], v247 offset:64
    """)
    for p in range(5):
        a(f"v_pk_mul_f32 {P(50+2*p)}, {P(50+2*p)}, {P(224)} op_sel:[0,0] op_sel_hi:[1,0]")
        a(f"v_pk_mul_f32 {P(60+2*p)}, {P(60+2*p)}, {P(224)} op_sel:[0,1] op_sel_hi:[1,1]")
    for p in range(10): a(f"v_cvt_pk_bf16_f32 v{70+p}, v{50+2*p}, v{51+2*p}")
    a(f"""
    s_waitcnt lgkmcnt(0)
    v_mfma_f32_32x32x16_bf16 v[16:31], v[0:3], v[70:73], 0
    v_mfma_f32_32x32x16_bf16 v[16:31], v[4:7], v[74:77], v[16:31]
    v_mfma_f32_32x32x8_bf16 v[16:31], v[8:9], v[78:79], v[16:31]
    v_add_f32 v28, {f2u(1e-6)}, v28
    v_rcp_f32 v28, v28
    """)
    for p in range(6): a(f"v_pk_mul_f32 {P(16+2*p)}, {P(16+2*p)}, {P(28)} op_sel:[0,0] op_sel_hi:[1,0]")
    for p in range(6): a(f"v_cvt_pk_bf16_f32 v{224+p}, v{16+2*p}, v{17+2*p}")
    a(f"""
    buffer_store_dwordx4 v[224:227], v248, {sWS}, s44 offen sc0 sc1
    buffer_store_dwordx2 v[228:229], v249, {sWS}, s44 offen sc0 sc1
    """)
    loads(2)
    a(f"""
    s_waitcnt vmcnt(9)
    s_barrier
    s_cmp_lg_u32 {WAVE}, 7
    s_cbranch_scc1 K2_NOSIG
    s_lshl_b32 s3, {TB}, 5
    v_mov_b32 v230, s3
    v_mov_b32 v231, 1
    s_mov_b64 exec, 1
    buffer_atomic_add v231, v230, {sDBG}, 0 offen
    s_mov_b64 exec, -1
K2_NOSIG:
    """)
    loads(3)
    if stamp: a("s_memtime s[92:93]")
    a(f"""
    s_cmp_lt_u32 {WAVE}, 6
    s_cbranch_scc1 K2_GO
    s_lshr_b32 s3, {RB}, 2
    s_lshl_b32 s3, s3, 5
    v_mov_b32 v230, s3
K2_POLL:
    buffer_load_dword v231, v230, {sDBG}, 0 offen sc1
    s_waitcnt vmcnt(0)
    v_readfirstlane_b32 s3, v231
    s_cmp_ge_u32 s3, 32
    s_cbranch_scc1 K2_POLLED
    s_sleep 4
    s_branch K2_POLL
K2_POLLED:
    s_mov_b32 s10, {WS_SIZE}
    """)
    if stamp: a("s_memtime s[92:93]")
    for d in range(4):
        hloads(d, KH0); a(f"s_add_u32 {KH0}, {KH0}, 4096")
    a("s_waitcnt vmcnt(0)")
    a.label("K2_GO")
    for st in range(10):
        d = st % 4; B = 80 + 36*d
        a(f"s_waitcnt vmcnt({9*min(3, 9-st)})")
        for mt in range(5):
            for t in range(4):
                c = 4*(t*5+mt)
                a(f"v_mfma_f32_16x16x32_bf16 v[{c}:{c+3}], v[{B+4*mt}:{B+4*mt+3}], v[{B+20+4*t}:{B+23+4*t}], {'0' if st==0 else f'v[{c}:{c+3}]'}")
        if st + 4 < 10:
            if st + 4 == 9:
                a(f"s_cmp_lt_u32 {WAVE}, 6\ns_cselect_b32 s10, 0, s10\ns_cselect_b32 s14, 0, s14")
            loads(d)
    if stamp: a("s_memtime s[94:95]")
    a(f"""
    v_and_b32 v224, 15, {LANE}
    v_mul_u32_u24 v224, 1280, v224
    v_lshrrev_b32 v225, 4, {LANE}
    v_lshl_add_u32 v224, v225, 3, v224
    s_lshl_b32 s3, {RB}, 6
    s_mul_i32 s3, s3, 1280
    s_mul_i32 s4, {CT}, 160
    s_add_u32 s45, s3, s4
    """)
    for i in range(3):
        a(f"""
        s_add_u32 s3, {WAVE}, {8*i}
        s_mul_i32 s4, s3, 52
        s_lshr_b32 s4, s4, 8                  ; tt
        s_mul_i32 s5, s4, 5
        s_sub_u32 s5, s3, s5                  ; mt
        s_mul_i32 s4, s4, {16*1280}
        s_lshl_b32 s5, s5, 5
        s_add_u32 s4, s4, s5
        s_add_u32 s{46+i}, s4, s45
        """)
        if i == 2:
            a(f"s_cmp_ge_u32 {WAVE}, 4\ns_cselect_b32 s26, 0, s26")
        a(f"buffer_load_dwordx2 v[{226+2*i}:{227+2*i}], v224, {sX}, s{46+i} offen")
    a(f"""
    s_mul_i32 s3, {WAVE}, 20480
    v_add_u32 v232, s3, {V16}
    """)
    for t in range(20): a(f"ds_write_b128 v232, v[{4*t}:{4*t+3}] offset:{1024*t}")
    a(f"""
    s_lshl_b32 s3, {WAVE}, 10
    v_add_u32 v232, s3, {V16}
    v_add_u32 v233, {3*20480}, v232
    v_add_u32 v234, {6*20480}, v232
    s_waitcnt lgkmcnt(0)
    s_barrier
    """)
    for i in range(3):
        if i == 2: a(f"s_cmp_ge_u32 {WAVE}, 4\ns_cbranch_scc1 K2_FIN")
        R = 80 + 32*i
        for w in range(8):
            a(f"ds_read_b128 v[{R+4*w}:{R+4*w+3}], v{232+w//3} offset:{(w%3)*20480 + i*8192}")
        a("s_waitcnt lgkmcnt(0)")
        for q in range(2):
            o = 2*q
            a(f"""
            v_pk_add_f32 {P(R+o)}, {P(R+o)}, {P(R+4+o)}
            v_pk_add_f32 {P(R+8+o)}, {P(R+8+o)}, {P(R+12+o)}
            v_pk_add_f32 {P(R+16+o)}, {P(R+16+o)}, {P(R+20+o)}
            v_pk_add_f32 {P(R+24+o)}, {P(R+24+o)}, {P(R+28+o)}
            v_pk_add_f32 {P(R+o)}, {P(R+o)}, {P(R+8+o)}
            v_pk_add_f32 {P(R+o)}, {P(R+o)}, {P(R+16+o)}
            """)
        for q in range(4): a(f"v_mul_f32 v{R+4+q}, {f2u(-LOG2E)}, v{R+q}")
        for q in range(4): a(f"v_exp_f32 v{R+4+q}, v{R+4+q}")
        for q in range(4): a(f"v_mul_f32 v{R+q}, v{R+q}, v{R+24+q}")
        for q in range(4): a(f"v_add_f32 v{R+4+q}, 1.0, v{R+4+q}")
        for q in range(4): a(f"v_rcp_f32 v{R+4+q}, v{R+4+q}")
        if i == 0: a("s_waitcnt vmcnt(0)")
        X = 226 + 2*i
        a(f"""
        v_lshlrev_b32 v{R+8}, 16, v{X}
        v_and_b32 v{R+9}, 0xffff0000, v{X}
        v_lshlrev_b32 v{R+10}, 16, v{X+1}
        v_and_b32 v{R+11}, 0xffff0000, v{X+1}
        """)
        for q in range(4): a(f"v_fmac_f32 v{R+8+q}, v{R+q}, v{R+4+q}")
        a(f"""
        v_cvt_pk_bf16_f32 v{R+12}, v{R+8}, v{R+9}
        v_cvt_pk_bf16_f32 v{R+13}, v{R+10}, v{R+11}
        buffer_store_dwordx2 v[{R+12}:{R+13}], v224, {sO}, s{46+i} offen
        """)
    a.label("K2_FIN")
    if stamp:
        a(f"""
        s_waitcnt vmcnt(0)
        s_memtime s[96:97]
        s_waitcnt lgkmcnt(0)
        s_sub_u32 s92, s92, s90
        s_sub_u32 s94, s94, s90
        s_sub_u32 s96, s96, s90
        v_mov_b32 v4, s92
        v_mov_b32 v5, s94
        v_mov_b32 v6, s96
        v_mov_b32 v7, 0
        s_lshl_b32 s3, s2, 3
        s_add_u32 s3, s3, {WAVE}
        s_lshl_b32 s3, s3, 4
        s_add_u32 s3, s3, {WS_SIZE - 131072}
        v_mov_b32 v1, 0
        buffer_store_dwordx4 v[4:7], v1, {sWS}, s3 offen
        """)
    a.label("K2_END")
    a("s_endpgm")
```

```python
HO_RB   = 74*4096
OFF_HO  = 0
OFF_W2  = 10*1024*1024
W2_CT   = 74*5*1024
OFF_PQA = 14*1024*1024
OFF_PQC = 16*1024*1024
OFF_P   = 17*1024*1024
OFF_ST  = 19*1024*1024
OFF_CS  = OFF_ST + 32768
OFF_FL  = OFF_CS + 65536
OFF_CF  = OFF_CS + 16384
OFF_CSP = OFF_FL + 131072
OFF_KI  = OFF_CSP + 262144
OFF_FR  = 13*1024*1024 + 262144
OFF_F3  = OFF_FR + 524288
OFF_EX  = 20*1024*1024
WS_SIZE = 20*1024*1024
```

```python
import sys
from asmlib import Asm
import k1
HDR = open('recurrent_scan__linear_kernel_hedgehog__glu_gated_geglu__prompt.s.ref').read().split('; Override launch')[0]
def kd(name, vgpr=256, sgpr=102):
    return f""".amdhsa_kernel {name}
  .amdhsa_next_free_vgpr {vgpr}
  .amdhsa_next_free_sgpr {sgpr}
  .amdhsa_accum_offset {min(256,(vgpr+3)//4*4)}
  .amdhsa_group_segment_fixed_size 0
  .amdhsa_kernarg_size 88
  .amdhsa_user_sgpr_count 2
  .amdhsa_user_sgpr_kernarg_segment_ptr 1
  .amdhsa_system_sgpr_workgroup_id_x 1
.end_amdhsa_kernel
"""
def build(kernels=("k1","k2"), stamp=False, **kw):
    out = HDR
    if "k1" in kernels: out += "; @launch kernel=k1_kernel grid=(256,1,1) block=(512,1,1) lds=163840\n"
    if "k2" in kernels: out += "; @launch kernel=k2_kernel grid=(256,1,1) block=(512,1,1) lds=163840\n"
    out += '.amdgcn_target "amdgcn-amd-amdhsa--gfx950"\n.text\n'
    names = []
    if "k1" in kernels:
        a = Asm(); k1.gen_k1(a, stamp=stamp, phase_fn=kw.get("phase_fn"), opt=kw.get("opt1", {})); out += a.render(); names.append("k1_kernel")
    if "k2" in kernels:
        import k2
        a = Asm(); k2.gen_k2(a, stamp=stamp, opt=kw.get("opt2", {})); out += a.render(); names.append("k2_kernel")
    out += '.section .rodata,"a"\n'
    for n in names: out += ".p2align 6\n" + kd(n)
    return out
if __name__ == "__main__":
    ks = sys.argv[2].split(",") if len(sys.argv) > 2 else ("k1","k2")
    open(sys.argv[1], "w").write(build(ks, stamp=len(sys.argv) > 3))
```

```python
import sys, re
from build import kd
from layout import *
def wrap(src, amp=100, mode="span", pos=None):
    lines = src.split("\n")
    li = [i for i,l in enumerate(lines) if l.startswith("; @launch")]
    launches = [lines[i] for i in li]
    head = lines[:li[0]]; rest = lines[li[-1]+1:]
    L = lambda n: f"; @launch kernel={n} grid=(1,1,1) block=(64,1,1) lds=0"
    new = launches[:pos[0]] + [L("pa_kernel")] + launches[pos[0]:pos[1]] + [L("pb_kernel")] + launches[pos[1]:] + [L("pz_kernel")]
    def rec(name, off):
        return f""".text
.globl {name}
.p2align 8
.type {name},@function
{name}:
    s_memrealtime s[10:11]
    s_cmp_ge_u32 s2, 1
    s_cbranch_scc1 {name}_E
    s_load_dwordx2 s[4:5], s[0:1], 80
    s_waitcnt lgkmcnt(0)
    v_mov_b32 v1, {off}
    v_mov_b32 v2, s10
    global_store_dword v1, v2, s[4:5]
{name}_E:
    s_endpgm
"""
    z = f""".text
.globl pz_kernel
.p2align 8
.type pz_kernel,@function
pz_kernel:
    s_cmp_ge_u32 s2, 1
    s_cbranch_scc1 pz_E
    s_load_dwordx2 s[4:5], s[0:1], 80
    s_waitcnt lgkmcnt(0)
    v_mov_b32 v1, {WS_SIZE+4096}
    global_load_dwordx2 v[2:3], v1, s[4:5] sc1
    s_waitcnt vmcnt(0)
    v_sub_u32 v2, v3, v2
    s_nop 1
    v_readfirstlane_b32 s14, v2
    s_nop 4
    s_min_u32 s14, s14, 20000
    s_mul_i32 s15, s14, {amp}
    s_memrealtime s[30:31]
    s_waitcnt lgkmcnt(0)
pz_S:
    s_sleep 8
    s_memrealtime s[32:33]
    s_waitcnt lgkmcnt(0)
    s_sub_u32 s32, s32, s30
    s_cmp_lt_u32 s32, s15
    s_cbranch_scc1 pz_S
pz_E:
    s_endpgm
"""
    body = "\n".join(rest)
    body += "\n" + rec("pa_kernel", WS_SIZE+4096) + rec("pb_kernel", WS_SIZE+4100) + z
    body += '.section .rodata,"a"\n' + "".join(".p2align 6\n" + kd(n, 16, 48) for n in ["pa_kernel","pb_kernel","pz_kernel"])
    return "\n".join(head + new) + "\n" + body
if __name__ == "__main__":
    src = open(sys.argv[1]).read()
    for nm, pos in [("all",(0,2)),("k1",(0,1)),("k2",(1,2)),("nil",(0,0))]:
        open(f"pr_{nm}.s","w").write(wrap(src, 100, pos=pos))
```

```python
import re

TRANS = ("v_exp_f32", "v_log_f32", "v_rcp_f32", "v_rsq_f32", "v_sqrt_f32", "v_sin_f32", "v_cos_f32")

def regs_of(tok):
    tok = tok.strip()
    tok = re.sub(r"^-", "", tok)
    m = re.match(r"^abs\((.*)\)$", tok)
    if m: tok = m.group(1)
    m = re.match(r"^\|(.*)\|$", tok)
    if m: tok = m.group(1)
    m = re.match(r"^([vas])(\d+)$", tok)
    if m: return {(m.group(1), int(m.group(2)))}
    m = re.match(r"^([vas])\[(\d+):(\d+)\]$", tok)
    if m: return {(m.group(1), i) for i in range(int(m.group(2)), int(m.group(3)) + 1)}
    if tok == "vcc": return {("s", "vcc")}
    if tok == "m0": return {("s", "m0")}
    if tok == "exec": return {("s", "exec")}
    return set()

class Ins:
    def __init__(self, text):
        self.text = text
        t = text.split(";")[0].strip()
        self.is_label = t.endswith(":")
        self.is_dir = t.startswith(".")
        parts = t.split(None, 1)
        self.mn = parts[0] if parts else ""
        rest = parts[1] if len(parts) > 1 else ""
        bm = " ".join(re.findall(r"\s\w+:\[[^\]]*\]", rest))
        rest = re.sub(r"\s\w+:\[[^\]]*\]", "", rest)
        ops = [o.strip() for o in rest.split(",")] if rest else []
        self.mods = ""
        if ops:
            lp = ops[-1].split(None, 1)
            if len(lp) > 1:
                ops[-1] = lp[0]; self.mods = lp[1]
        self.mods += " " + bm
        self.ops = ops
        mn = re.sub(r"_(e32|e64|dpp|sdwa)$", "", self.mn)
        self.base = mn
        self.kind = "other"; self.dst = set(); self.src = set(); self.srcC = set(); self.srcAB = set(); self.sdata = set()
        self.passes = 0
        R = regs_of
        if self.is_label or self.is_dir or not mn: return
        if mn.startswith("v_mfma"):
            self.kind = "mfma"; self.dst = R(ops[0]); self.srcAB = R(ops[1]) | R(ops[2]); self.srcC = R(ops[3]); self.src = self.srcAB | self.srcC
            self.passes = 8 if "32x32" in mn else 4
        elif mn.startswith("v_"):
            self.kind = "valu"
            self.dst = R(ops[0]); self.src = set().union(*[R(o) for o in ops[1:]]) if len(ops) > 1 else set()
            if mn in ("v_fmac_f32", "v_dot2c_f32_bf16") or "dpp" in self.mn or "row_" in self.mods or "quad_perm" in self.mods: self.src |= self.dst
            if mn.startswith("v_permlane"): self.dst = R(ops[0]) | R(ops[1]); self.src = set(self.dst)
            if mn in ("v_add_co_u32", "v_addc_co_u32", "v_sub_co_u32"): self.dst |= R(ops[1])
            if mn == "v_cndmask_b32" and len(ops) == 3: self.src |= {("s", "vcc")}
        elif mn.startswith("ds_read"):
            self.kind = "ds"; self.dst = R(ops[0]); self.src = R(ops[1])
        elif mn.startswith("ds_write") or mn.startswith("ds_add"):
            self.kind = "ds"; self.src = set().union(*[R(o) for o in ops])
        elif mn.startswith("ds_swizzle") or mn.startswith("ds_bpermute"):
            self.kind = "ds"; self.dst = R(ops[0]); self.src = set().union(*[R(o) for o in ops[1:]])
        elif mn.startswith("buffer_load") or mn.startswith("global_load"):
            self.kind = "vmem"
            if re.search(r"\blds\b", self.mods) or "_lds_" in mn:
                self.src = set().union(*[R(o) for o in ops]) | {("s", "m0")}; self.isdma = True
            else:
                self.dst = R(ops[0]); self.src = set().union(*[R(o) for o in ops[1:]])
        elif mn.startswith("buffer_store") or mn.startswith("buffer_atomic") or mn.startswith("global_store") or mn.startswith("global_atomic"):
            self.kind = "vmem"; self.src = set().union(*[R(o) for o in ops])
            if "x4" in mn or "x3" in mn: self.sdata = R(ops[0]) if mn.startswith("buffer") else R(ops[1])
            if "atomic" in mn and "sc0" in self.mods: self.dst = R(ops[0])
        elif mn.startswith("s_"):
            self.kind = "salu"
            if mn in ("s_nop", "s_waitcnt", "s_barrier", "s_endpgm", "s_branch", "s_sleep", "s_setprio") or mn.startswith("s_cbranch") or mn.startswith("s_cmp"):
                self.src = set().union(*[R(o) for o in ops]) if ops else set()
            else:
                self.dst = R(ops[0]); self.src = set().union(*[R(o) for o in ops[1:]]) if len(ops) > 1 else set()
    def states(self):
        if self.is_label or self.is_dir or not self.mn: return 0
        if self.mn == "s_nop": return int(self.ops[0], 0) + 1
        return 1

def need(p, c):
    n = 0
    vd = {r for r in p.dst if r[0] in "va"}
    sd = {r for r in p.dst if r[0] == "s"}
    if p.kind == "valu":
        if c.kind == "mfma" and vd & c.src: n = max(n, 2)
        if c.kind == "valu":
            if p.base in TRANS and vd & c.src: n = max(n, 1)
            if c.base in ("v_readfirstlane_b32", "v_readlane_b32") and vd & c.src: n = max(n, 1)
            if (c.base.startswith("v_permlane") or "dpp" in c.mn or "row_" in c.mods or "quad_perm" in c.mods) and vd & c.src: n = max(n, 2)
            if sd & c.src: n = max(n, 4 if c.base in ("v_readlane_b32", "v_writelane_b32") else 2)
            if p.base.startswith("v_dot2") and vd & (c.src | c.dst):
                if not (c.base == p.base and c.dst == p.dst and not (vd & (set().union(*[regs_of(o) for o in c.ops[1:3]])))): n = max(n, 3)
            if ("sdwa" in p.mn or "op_sel" in p.mods) and vd & (c.src | c.dst) and not p.base.startswith("v_pk_"): n = max(n, 1)
        if c.kind in ("vmem", "ds"):
            if sd & c.src: n = max(n, 5)
            if p.base in TRANS and vd & c.src: n = max(n, 1)
            if p.base.startswith("v_dot2") and vd & c.src: n = max(n, 3)
        if c.kind == "salu" and sd & c.src: n = max(n, 4)
    if p.kind == "mfma":
        big = 12 if p.passes == 8 else 8
        if c.kind == "valu" and vd & (c.src | c.dst): n = max(n, big)
        if c.kind in ("vmem", "ds") and vd & (c.src | c.dst): n = max(n, big)
        if c.kind == "mfma":
            if vd & c.srcAB: n = max(n, big)
            if vd & c.srcC and not (c.srcC == p.dst and c.passes == p.passes): n = max(n, 10 if p.passes == 8 else 6)
            if vd & c.dst and not (vd & c.srcC): n = max(n, big)
        if c.kind == "valu" and p.srcC & c.dst: n = max(n, 7 if p.passes == 8 else 3)
    if p.kind == "salu" and ("s", "m0") in p.dst and c.kind == "vmem" and ("s", "m0") in c.src: n = max(n, 1)
    if p.kind == "vmem" and p.sdata:
        if c.kind == "valu" and p.sdata & c.dst: n = max(n, 2)
        elif p.sdata & c.dst: n = max(n, 1)
    return n

class Asm:
    def __init__(self):
        self.lines = []
    def __call__(self, text):
        for l in text.split("\n"):
            l = l.rstrip()
            if l.strip(): self.lines.append(l.strip())
    def label(self, name): self.lines.append(name + ":")
    def render(self):
        out = []; hist = []
        for l in self.lines:
            i = Ins(l)
            if not (i.is_label or i.is_dir or not i.mn):
                req = 0; dist = 0
                for p in reversed(hist):
                    n = need(p, i)
                    if n - dist > req: req = n - dist
                    dist += p.states()
                    if dist >= 24: break
                while req > 0:
                    k = min(req, 16)
                    nop = Ins(f"s_nop {k-1}")
                    out.append("    " + nop.text); hist.append(nop); req -= k
                hist.append(i); hist = hist[-40:]
                out.append("    " + l)
            else:
                out.append(l)
        return "\n".join(out) + "\n"

class Stamper:
    def __init__(self, a, on, base=78, n=10):
        self.a = a; self.on = on; self.base = base; self.n = n; self.names = []
    def start(self):
        if self.on:
            self.a(f"s_memrealtime s[{self.base}:{self.base+1}]\ns_memtime s[98:99]")
            for i in range(1, self.n): self.a(f"s_mov_b32 s{self.base+2*i}, 0")
    def __call__(self, i):
        if getattr(self, 'ampat', None) == i: self.a("s_memrealtime s[96:97]")
        if isinstance(i, str):
            if i not in self.names: return
            i = self.names.index(i) + 1
        if self.on: self.a(f"{'s_memtime' if getattr(self, 'cyc', False) else 's_memrealtime'} s[{self.base+2*i}:{self.base+2*i+1}]")
    def finish(self, srd, wave, off):
        if not self.on: return
        a = self.a
        a(f"s_waitcnt vmcnt(0)\ns_memrealtime s[{self.base+2*(self.n-1)}:{self.base+2*(self.n-1)+1}]\ns_memtime s[100:101]\ns_waitcnt lgkmcnt(0)")
        a(f"s_lshl_b32 s3, s2, 3\ns_add_u32 s3, s3, {wave}\ns_lshl_b32 s3, s3, 6\ns_add_u32 s3, s3, {off}\nv_mov_b32 v1, 0")
        vals = ["s98", "s100"] + [f"s{self.base+2*i}" for i in range(self.n)]
        for i, v in enumerate(vals): a(f"v_mov_b32 v{4+i}, {v}")
        a("s_getreg_b32 s4, hwreg(HW_REG_XCC_ID)\ns_getreg_b32 s5, hwreg(HW_REG_HW_ID)\nv_mov_b32 v16, s4\nv_mov_b32 v17, s5")
        for q in range(4): a(f"buffer_store_dwordx4 v[{4+4*q}:{7+4*q}], v1, {srd}, s3 offen offset:{16*q}")
```

```python
from asmlib import Asm, Stamper
from layout import *

WSLOT = 24576; XBASE = 98304; PHIB = 147456
C0 = -2.0*0.7978845608028654*1.4426950408889634
LOG2E = 1.4426950408889634
import struct
def f2u(f): return "0x%08x" % struct.unpack("<I", struct.pack("<f", f))[0]

def k1_table(phase_fn=None):
    quarters = [[('S',0),('C',0),('C',1),('KV',0)],
                [('Q',0),('C',2),('C',3),('KV',1)],
                [('Q',1),('C',4),('C',5),('KV',2)],
                [('C',6),('C',7),('C',8),('KV',3)]]
    rolen = {'C':0,'KV':1,'Q':2,'S':3}
    tab = []
    sl = []
    f = 30
    for m in range(2):
        for n in [4,4,4,3,3,3,3,3]:
            sl.append((f, n)); f += n
    for wg in range(256):
        xcd = wg & 7; j = wg >> 3
        R = xcd & 1; Cq = xcd >> 1
        role, col = quarters[Cq][j >> 3]
        rb = R*8 + (j & 7)
        ph = (Cq + 2*R + (rb & 1)) & 3
        u0 = [0,3,5,8][ph] if phase_fn is None else phase_fn(R, Cq, rb, j >> 3)
        af, an = 0, 0
        if role == 'S': af, an = sl[rb]
        if role == 'Q':
            q = col*16 + rb
            if q < 30: af, an = q, 1
        tab.append((rolen[role], rb, col, u0 | (af << 8) | (an << 16)))
    return tab

sX='s[8:11]'; sW='s[12:15]'; sWS='s[16:19]'; sDBG='s[20:23]'; sA='s[24:27]'
ROLE='s28'; RB='s29'; COL='s30'; PAR='s31'
WAVE='s32'; KW='s33'; KX='s34'; KW0='s35'; KX0='s36'; WSTR='s37'; WSTEP='s38'; WEND='s39'
MW='s40'; MX='s41'; IT='s42'
PBASE='s43'; PREG='s44'; PA='s45'; PB='s46'
T0='s47'; T1='s48'; T2='s49'; T3='s50'
pX='s[52:53]'; pQKV='s[54:55]'; pPHI='s[56:57]'; pWO='s[58:59]'; pBX='s[60:61]'; pG='s[62:63]'; pU='s[64:65]'; pD='s[66:67]'
pOUT='s[68:69]'; pDBG='s[70:71]'; pWSp='s[72:73]'
def lo(p): return 's' + p[2:].split(':')[0]
def hi(p): return 's' + p[2:-1].split(':')[1]
def srd(a, s, ptr, size):
    b = int(s[2:].split(':')[0])
    a(f"s_mov_b32 s{b}, {lo(ptr)}\ns_mov_b32 s{b+1}, {hi(ptr)}\ns_mov_b32 s{b+2}, {size}\ns_mov_b32 s{b+3}, 0x00020000")

LANE='v250'; VW=['v240','v241','v242']; VX=['v243','v244']
FA=200; FB=220
NPROD = 48

def gen_k1(a, name="k1_kernel", phase_fn=None, stamp=False, opt={}):
    a(f".globl {name}\n.p2align 8\n.type {name},@function")
    a.label(name)
    a(f"""
    s_cmp_ge_u32 s2, 256
    s_cbranch_scc1 K1_END
    s_load_dwordx16 s[52:67], s[0:1], 0
    s_load_dwordx4 s[68:71], s[0:1], 64
    s_load_dwordx2 s[72:73], s[0:1], 80
    s_getpc_b64 s[4:5]
K1_PC:
    s_lshl_b32 s3, s2, 4
    s_add_u32 s3, s3, K1_TAB-K1_PC
    s_load_dwordx4 s[28:31], s[4:5], s3
    v_and_b32 {LANE}, 63, v0
    v_lshrrev_b32 v1, 6, v0
    v_readfirstlane_b32 {WAVE}, v1
    """)
    T = Stamper(a, stamp); T.start()
    a("s_waitcnt lgkmcnt(0)")
    srd(a, sX, pX, 2621440); srd(a, sWS, pWSp, WS_SIZE); srd(a, sDBG, pDBG, 256)
    srd(a, sW, pQKV, 640*3840); srd(a, sA, pQKV, 640*3840)
    a(f"""
    s_cmp_eq_u32 {ROLE}, 3
    s_cbranch_scc1 K1_SPARE
    s_cmp_eq_u32 {ROLE}, 2
    s_cbranch_scc1 K1_QAUX
K1_GEMM:
    """)
    a(f"""
    s_and_b32 {T0}, {PAR}, 0xff
    s_lshl_b32 {KX}, {T0}, 7
    s_mov_b32 {KX0}, {KX}
    s_lshr_b32 {T1}, {WAVE}, 2            ; region
    s_and_b32 {T2}, {WAVE}, 3             ; kgroup
    s_mov_b32 {WSTR}, 3840
    s_cmp_lg_u32 {ROLE}, 0
    s_cbranch_scc1 K1_SETQKV
    ; role C
    s_mov_b32 {WSTR}, 3456
    s_cmp_eq_u32 {T1}, 0
    s_cselect_b32 s12, {lo(pG)}, {lo(pU)}
    s_cselect_b32 s13, {hi(pG)}, {hi(pU)}
    s_mov_b32 s14, {640*3456}
    s_mul_i32 {PBASE}, {COL}, 192
    s_mov_b32 {PREG}, 0
    s_mov_b32 {PA}, 40
    s_mov_b32 {PB}, 80
    s_branch K1_SET2
K1_SETQKV:
    s_mul_i32 {PBASE}, {COL}, 320
    s_mov_b32 {PREG}, 160
    s_mov_b32 {PA}, 40
    s_mov_b32 {PB}, 80
    s_cmp_eq_u32 {ROLE}, 2
    s_cbranch_scc1 K1_SET2
    s_mul_i32 {PBASE}, {COL}, 160
    s_add_u32 {PBASE}, {PBASE}, 640
    s_mov_b32 {PREG}, 80
    s_mov_b32 {PA}, 640
    s_mov_b32 {PB}, 40
K1_SET2:
    s_mul_i32 {KW}, {T0}, {WSTR}
    s_lshl_b32 {KW}, {KW}, 6
    s_mov_b32 {KW0}, {KW}
    s_lshl_b32 {WSTEP}, {WSTR}, 5
    s_mul_i32 {WEND}, {WSTR}, 640
    ; M0 bases
    s_mul_i32 {MW}, {T1}, 12288
    s_lshl_b32 {T3}, {T2}, 10
    s_add_u32 {MW}, {MW}, {T3}
    s_lshl_b32 {MX}, {WAVE}, 11
    s_add_u32 {MX}, {MX}, {XBASE}
    v_lshrrev_b32 v1, 3, {LANE}           ; row8
    v_and_b32 v2, 7, {LANE}               ; pos
    v_lshrrev_b32 v3, 1, v1               ; row8>>1
    v_xor_b32 v4, v2, v3
    v_lshlrev_b32 v4, 4, v4
    s_lshl_b32 {T3}, {RB}, 7
    s_lshl_b32 s3, {WAVE}, 4
    s_add_u32 {T3}, {T3}, s3
    v_add_u32 v5, {T3}, v1
    v_mul_u32_u24 v5, 1280, v5
    v_add_u32 {VX[0]}, v5, v4
    v_xor_b32 v4, 64, v4
    v_add_u32 {VX[1]}, v5, v4
    v_add_u32 {VX[1]}, {8*1280}, {VX[1]}
    s_mov_b32 m0, {MX}
    buffer_load_dwordx4 {VX[0]}, {sX}, {KX} offen lds
    s_add_u32 m0, {MX}, 1024
    buffer_load_dwordx4 {VX[1]}, {sX}, {KX} offen lds
    v_and_b32 v3, 1, v3
    s_lshl_b32 s3, {T1}, 1
    v_xor_b32 v3, s3, v3
    v_lshlrev_b32 v3, 1, v3
    v_xor_b32 v3, v2, v3
    s_lshl_b32 s3, {T2}, 3
    v_add_u32 v6, s3, v1
    v_mul_lo_u32 v6, v6, {WSTR}
    s_mul_i32 s3, {T1}, {PREG}
    s_add_u32 s3, s3, {PBASE}
    s_lshl_b32 s3, s3, 1
    v_add_u32 v6, s3, v6
    s_cmp_eq_u32 {ROLE}, 0
    s_cselect_b32 s3, 24, 20
    """)
    for u in range(3):
        a(f"""
        v_add_u32 v4, {8*u}, v3
        v_mul_u32_u24 v5, 52, v4
        v_lshrrev_b32 v5, 8, v5               ; seg = c16/5
        v_mul_u32_u24 v7, 5, v5
        v_sub_u32 v7, v4, v7
        v_lshlrev_b32 v7, 3, v7               ; columns
        v_and_b32 v8, 1, v5
        v_mad_u32_u24 v7, v8, {PA}, v7
        v_lshrrev_b32 v8, 1, v5
        v_mad_u32_u24 v7, v8, {PB}, v7
        v_lshl_add_u32 {VW[u]}, v7, 1, v6
        """)
        if u == 2:
            a(f"""
            v_cmp_gt_u32 vcc, s3, v4
            v_mov_b32 v8, 0x40000000
            v_cndmask_b32 {VW[u]}, v8, {VW[u]}, vcc
            """)
    def adv_x():
        a(f"""
        s_add_u32 {KX}, {KX}, 128
        s_cmp_eq_u32 {KX}, 1280
        s_cselect_b32 {KX}, 0, {KX}
        s_cmp_eq_u32 {KX}, {KX0}
        s_cselect_b32 s10, 0, s10
        """)
    def adv_w():
        a(f"""
        s_add_u32 {KW}, {KW}, {WSTEP}
        s_cmp_eq_u32 {KW}, {WEND}
        s_cselect_b32 {KW}, 0, {KW}
        s_cmp_eq_u32 {KW}, {KW0}
        s_cselect_b32 s14, 0, s14
        """)
    def dma_w(slot):
        L = []
        for u in range(3):
            L.append(f"s_add_u32 m0, {MW}, {slot*WSLOT + u*4096}\nbuffer_load_dwordx4 {VW[u]}, {sW}, {KW} offen lds")
        return L
    def dma_x(xs):
        return [f"s_add_u32 m0, {MX}, {xs*16384 + i*1024}\nbuffer_load_dwordx4 {VX[i]}, {sX}, {KX} offen lds" for i in range(2)]
    adv_x()
    for s in range(3):
        for t in dma_w(s): a(t)
        adv_w()
    a(f"""
    s_cmp_lg_u32 {ROLE}, 0
    s_cbranch_scc1 K1_QKVLOOP
    """)

    def mainloop(tag, ntt, nct, acc0, RW, RX, FA, FB):
        def reads(jj, s, F):
            L = []
            xs = (jj >> 1) & 1; ks = (jj & 1)*2 + s
            for t in range(ntt):
                L.append(f"ds_read_b128 v[{F+4*t}:{F+4*t+3}], {RX[ks]} offset:{xs*16384 + t*4096}")
            for c in range(nct):
                b = F + 4*ntt + 4*c
                for i in range(2):
                    L.append(f"ds_read_b64_tr_b16 v[{b+2*i}:{b+2*i+1}], {RW[jj>>1][c]} offset:{(jj&1)*WSLOT + (16*s+4*i)*128}")
            return L
        def mfmas(F):
            L = []
            for c in range(nct):
                for t in range(ntt):
                    d = acc0 + 16*(t*nct + c)
                    b = F + 4*ntt + 4*c
                    L.append(f"v_mfma_f32_32x32x16_bf16 v[{d}:{d+15}], v[{b}:{b+3}], v[{F+4*t}:{F+4*t+3}], v[{d}:{d+15}]")
            return L
        def weave(M, R, per):
            R = list(R)
            for m in M:
                a(m)
                for _ in range(per):
                    if R: a(R.pop(0))
            for r in R: a(r)
        for r in range(acc0, acc0 + 16*ntt*nct): a(f"v_mov_b32 v{r}, 0")
        a(f"s_mov_b32 {IT}, 5")
        T(1)
        a("s_waitcnt vmcnt(6)\ns_barrier")
        T(2)
        for t in reads(0, 0, FA): a(t)
        nm = ntt*nct
        pos0 = opt.get("dpos", {6: {3:[3,7,10], 5:[2,4,6,8,10]}, 5: {3:[3,6,8], 5:[1,3,5,7,8]}})[nm][5]
        for i, t in enumerate(dma_x(1) + dma_w(3)):
            if pos0[i] < nm: a(t)
        if opt.get("prio"):
            a(f"s_cmp_ge_u32 {WAVE}, 4\ns_cbranch_scc0 {tag}_NP\ns_setprio 1\n{tag}_NP:")
        a(f"s_branch {tag}_ENTRY")
        a.label(f"{tag}_LOOP")
        for jj in range(4):
            a(f"s_waitcnt vmcnt({6 if jj%2==0 else 8}) lgkmcnt(0)")
            if not opt.get("nobar"): a("s_barrier")
            D = []
            if jj % 2 == 0: D += dma_x(((jj >> 1) + 1) & 1)
            D += dma_w((jj + 3) & 3)
            if opt.get("nodma"): D = []
            per = opt.get("per", 3)
            nm = ntt*nct
            pos = opt.get("dpos", {6: {3:[3,7,10], 5:[2,4,6,8,10]}, 5: {3:[3,6,8], 5:[1,3,5,7,8]}})[nm].get(len(D), [])
            def phase(M, R, g0):
                R = list(R)
                for i, m in enumerate(M):
                    d = None
                    if (g0 + i) in pos:
                        d = D[pos.index(g0 + i)].split("\n"); a(d[0])
                    a(m)
                    if d: a(d[1])
                    for _ in range(per):
                        if R: a(R.pop(0))
                for r in R: a(r)
            phase(mfmas(FB), reads(jj, 0, FA), 0)
            if jj == 0: a.label(f"{tag}_ENTRY")
            a("s_waitcnt lgkmcnt(0)")
            phase(mfmas(FA), reads(jj, 1, FB), nm)
            if jj % 2 == 0: adv_x()
            adv_w()
        a(f"""
        s_sub_u32 {IT}, {IT}, 1
        s_cmp_lg_u32 {IT}, 0
        s_cbranch_scc1 {tag}_LOOP
        s_waitcnt lgkmcnt(0)
        """)
        for m in mfmas(FB): a(m)

    def xread_addrs(RX, tokbase_s):
        a(f"""
        v_and_b32 v1, 31, {LANE}
        v_lshrrev_b32 v2, 5, {LANE}
        v_bfe_u32 v3, {LANE}, 1, 3
        v_xor_b32 v3, v2, v3
        v_lshlrev_b32 v3, 4, v3
        v_add_u32 v1, {tokbase_s}, v1
        v_lshl_add_u32 v3, v1, 7, v3
        v_add_u32 {RX[0]}, {XBASE}, v3
        """)
        for s in range(1, 4): a(f"v_xor_b32 {RX[s]}, {32*s}, {RX[0]}")
    def wread_addrs(RW, nct, tile0_s):
        a(f"""
        v_bfe_u32 v1, {LANE}, 2, 2            ; r
        v_lshrrev_b32 v2, 5, {LANE}           ; hh
        v_lshl_add_u32 v2, v2, 3, v1
        v_lshl_add_u32 v11, v2, 7, v11
        v_mul_u32_u24 v2, 12288, v10
        v_add_u32 v11, v2, v11
        v_lshrrev_b32 v1, 1, v1
        v_lshlrev_b32 v2, 1, v10
        v_xor_b32 v1, v1, v2                  ; 2region ^ (r>>1)
        """)
        for c in range(nct):
            a(f"""
            s_add_u32 s3, {tile0_s}, {c}
            s_and_b32 s4, s3, 3
            s_lshr_b32 s3, s3, 2
            s_lshl_b32 s3, s3, 12
            v_xor_b32 v2, s4, v1
            v_lshl_add_u32 v2, v2, 5, v11
            v_add_u32 {RW[0][c]}, s3, v2
            v_add_u32 {RW[1][c]}, {2*WSLOT}, {RW[0][c]}
            """)
    def poll(tag):
        a(f"""
        v_mov_b32 v252, 0
{tag}_POLL:
        buffer_load_dword v253, v252, {sDBG}, 0 offen sc1
        s_waitcnt vmcnt(0)
        v_readfirstlane_b32 s3, v253
        s_cmp_ge_u32 s3, {NPROD}
        s_cbranch_scc1 {tag}_POLLED
        s_sleep 2
        s_branch {tag}_POLL
{tag}_POLLED:
        """)
    def negm_frag(dst, st):
        a(f"""
        v_cmp_gt_u32 vcc, 32, {LANE}
        v_cndmask_b32 v{dst}, 0, v{st}, vcc
        v_and_b32 v{dst+1}, 0xffff, v{dst}
        """)

    RWc = [['v230','v231','v232'], ['v233','v234','v235']]; RXc = ['v236','v237','v238','v239']
    a(f"""
    s_and_b32 {T0}, {WAVE}, 1
    s_lshr_b32 {T1}, {WAVE}, 1
    s_lshl_b32 {T2}, {T0}, 6
    s_mul_i32 {T3}, {T1}, 3
    v_bfe_u32 v10, {LANE}, 4, 1           ; region = g16
    v_and_b32 v11, 1, {LANE}
    v_lshlrev_b32 v11, 4, v11
    v_bfe_u32 v12, {LANE}, 1, 1
    v_lshl_add_u32 v11, v12, 3, v11
    """)
    wread_addrs(RWc, 3, T3); xread_addrs(RXc, T2)
    mainloop("K1C", 2, 3, 0, RWc, RXc, 100, 120)
    T(3)
    poll("K1C")
    a(f"""
    v_and_b32 v96, 31, {LANE}
    s_lshl_b32 s3, {RB}, 7
    s_add_u32 s3, s3, {T2}
    v_add_u32 v97, s3, v96
    v_lshlrev_b32 v97, 3, v97
    s_mov_b32 s4, {OFF_ST}
    buffer_load_dwordx2 v[100:101], v97, {sWS}, s4 offen sc1
    buffer_load_dwordx2 v[102:103], v97, {sWS}, s4 offen offset:256 sc1
    v_and_b32 v98, 3, v96
    v_bfe_u32 v99, v96, 2, 1
    v_lshl_add_u32 v98, v99, 3, v98
    v_bfe_u32 v99, v96, 3, 1
    v_lshl_add_u32 v98, v99, 2, v98
    v_lshrrev_b32 v99, 4, v96
    v_mul_u32_u24 v99, 1728, v99
    v_add_u32 v98, v99, v98
    s_lshl_b32 s3, {T3}, 4
    s_add_u32 s3, s3, {PBASE}
    s_add_u32 s3, s3, 1920
    v_add_u32 v98, s3, v98
    v_lshlrev_b32 v98, 3, v98
    s_mov_b32 s4, {OFF_CS}
    buffer_load_dwordx2 v[104:105], v98, {sWS}, s4 offen sc1
    buffer_load_dwordx2 v[106:107], v98, {sWS}, s4 offen offset:128 sc1
    buffer_load_dwordx2 v[108:109], v98, {sWS}, s4 offen offset:256 sc1
    v_and_b32 v98, 15, {LANE}
    v_lshlrev_b32 v98, 4, v98
    v_bfe_u32 v99, {LANE}, 4, 1
    v_lshl_add_u32 v98, v99, 10, v98
    v_lshrrev_b32 v99, 5, {LANE}
    v_lshl_add_u32 v98, v99, 8, v98
    s_lshl_b32 s3, {RB}, 1
    s_add_u32 s3, s3, {T0}
    s_mul_i32 s5, s3, {HO_RB}
    s_mul_i32 s6, {COL}, 12
    s_add_u32 s6, s6, {T3}
    s_waitcnt vmcnt(0)
    """)
    T(4)
    negm_frag(110, 100); negm_frag(112, 102)
    for c in range(3):
        for t in range(2):
            d = 16*(t*3 + c)
            a(f"v_mfma_f32_32x32x8_bf16 v[{d}:{d+15}], v[{104+2*c}:{105+2*c}], v[{110+2*t}:{111+2*t}], v[{d}:{d+15}]")
    for t in range(2):
        sd = 101 + 2*t; k = 114 + 4*t
        a(f"""
        v_rcp_f32 v99, v{sd}
        v_mul_f32 v{k+2}, v{sd}, v{sd}
        v_mul_f32 v{k+1}, {f2u(C0)}, v99
        v_mul_f32 v99, v99, v99
        v_mul_f32 v99, {f2u(0.044715)}, v99
        v_mul_f32 v{k}, v99, v{k+1}
        """)
    for c in range(3):
        a(f"""
        s_add_u32 s3, s6, {c}
        s_lshr_b32 s4, s3, 1
        s_lshl_b32 s4, s4, 12
        s_and_b32 s3, s3, 1
        s_lshl_b32 s3, s3, 9
        s_add_u32 s4, s4, s3
        s_add_u32 s{74+c}, s4, s5
        """)
    nst = 0
    for c in range(3):
        for t in range(2):
            d = 16*(t*3 + c); k = 114 + 4*t
            tb = 124 + (nst & 1)*12
            P = lambda r: f"v[{r}:{r+1}]"
            for p in range(4): a(f"v_pk_mul_f32 {P(tb+2*p)}, {P(d+2*p)}, {P(d+2*p)}")
            for p in range(4): a(f"v_pk_fma_f32 {P(tb+2*p)}, {P(tb+2*p)}, {P(k)}, {P(k)} op_sel:[0,0,1] op_sel_hi:[1,0,1]")
            for p in range(4): a(f"v_pk_mul_f32 {P(tb+2*p)}, {P(tb+2*p)}, {P(d+2*p)}")
            for p in range(8): a(f"v_exp_f32 v{tb+p}, v{tb+p}")
            for p in range(4): a(f"v_pk_mul_f32 {P(d+2*p)}, {P(d+2*p)}, {P(d+8+2*p)}")
            for p in range(4): a(f"v_pk_fma_f32 {P(tb+2*p)}, {P(tb+2*p)}, {P(k+2)}, {P(k+2)} op_sel:[0,0,0] op_sel_hi:[1,0,0]")
            for p in range(8): a(f"v_rcp_f32 v{tb+p}, v{tb+p}")
            for p in range(4): a(f"v_pk_mul_f32 {P(d+2*p)}, {P(d+2*p)}, {P(tb+2*p)}")
            for p in range(4): a(f"v_cvt_pk_bf16_f32 v{tb+8+p}, v{d+2*p}, v{d+2*p+1}")
            a(f"buffer_store_dwordx4 v[{tb+8}:{tb+11}], v98, {sWS}, s{74+c} offen offset:{t*2048} {opt.get('st','')}")
            nst += 1
    a("s_branch K1_FIN")

    a.label("K1_QKVLOOP")
    RWq = [['v226','v227','v228','v229','v230'], ['v231','v232','v233','v234','v235']]; RXq = ['v236','v237','v238','v239']
    srd(a, sA, pPHI, 25600)
    a(f"""
    s_mul_i32 s3, {ROLE}, 6400
    s_mul_i32 s4, {COL}, s3
    s_lshl_b32 s5, {WAVE}, 11
    v_lshl_add_u32 v1, {LANE}, 4, s5
    v_add_u32 v2, 1024, v1
    v_mov_b32 v3, 0x40000000
    v_cmp_gt_u32 vcc, s3, v1
    v_cndmask_b32 v1, v3, v1, vcc
    v_cmp_gt_u32 vcc, s3, v2
    v_cndmask_b32 v2, v3, v2, vcc
    s_add_u32 m0, s5, {PHIB}
    buffer_load_dwordx4 v1, {sA}, s4 offen lds
    s_add_u32 m0, s5, {PHIB+1024}
    buffer_load_dwordx4 v2, {sA}, s4 offen lds
    s_and_b32 {T0}, {WAVE}, 3
    s_lshr_b32 {T1}, {WAVE}, 2
    s_lshl_b32 {T2}, {T0}, 5
    s_mul_i32 {T3}, {T1}, 5
    v_and_b32 v10, 1, {LANE}
    v_bfe_u32 v11, {LANE}, 1, 1
    v_bfe_u32 v12, {LANE}, 4, 1
    v_lshl_add_u32 v11, v12, 1, v11
    v_lshlrev_b32 v11, 3, v11             ; (cc>>1)*8
    """)
    wread_addrs(RWq, 5, T3); xread_addrs(RXq, T2)
    mainloop("K1Q", 1, 5, 0, RWq, RXq, 100, 124)
    T(3)
    poll("K1Q")
    a(f"""
    v_and_b32 v96, 31, {LANE}
    s_lshl_b32 s3, {RB}, 7
    s_add_u32 s3, s3, {T2}
    v_add_u32 v97, s3, v96
    v_lshlrev_b32 v97, 3, v97
    s_mov_b32 s4, {OFF_ST}
    buffer_load_dwordx2 v[100:101], v97, {sWS}, s4 offen sc1
    v_and_b32 v90, 3, v96
    v_bfe_u32 v91, v96, 2, 1              ; region
    v_mad_u32_u24 v90, v91, {PREG}, v90
    v_add_u32 v90, {PBASE}, v90
    v_lshrrev_b32 v91, 3, v96             ; cc>>1
    s_lshl_b32 s3, {T3}, 2
    v_add_u32 v91, s3, v91
    s_mov_b32 s4, {OFF_CS}
    """)
    for c in range(5):
        a(f"""
        v_add_u32 v92, {4*c}, v91
        v_mul_u32_u24 v93, 26, v92
        v_lshrrev_b32 v93, 8, v93
        v_mul_u32_u24 v94, 10, v93
        v_sub_u32 v92, v92, v94
        v_lshl_add_u32 v92, v92, 2, v90
        v_and_b32 v94, 1, v93
        v_mad_u32_u24 v92, v94, {PA}, v92
        v_lshrrev_b32 v94, 1, v93
        v_mad_u32_u24 v92, v94, {PB}, v92
        v_lshlrev_b32 v92, 3, v92
        buffer_load_dwordx2 v[{104+2*c}:{105+2*c}], v92, {sWS}, s4 offen sc1
        """)
    ZOFF = PHIB + 12800
    a(f"""
    v_bfe_u32 v90, {LANE}, 2, 2           ; r
    v_mul_u32_u24 v90, 40, v90
    v_bfe_u32 v91, {LANE}, 1, 1
    v_bfe_u32 v92, {LANE}, 4, 1
    v_lshl_add_u32 v91, v92, 1, v91
    v_and_b32 v92, 1, {LANE}              ; H
    v_lshrrev_b32 v93, 5, {LANE}          ; hh
    s_mul_i32 s3, {ROLE}, 1600
    s_mul_i32 s4, s3, {T1}
    s_add_u32 s4, s4, {PHIB}
    s_lshl_b32 s3, s3, 1
    v_mad_u32_u24 v90, v92, s3, v90
    v_add_u32 v90, s4, v90
    v_lshl_add_u32 v94, v91, 3, v90
    v_mov_b32 v95, {ZOFF}
    v_cmp_eq_u32 vcc, v92, v93
    v_cndmask_b32 v248, v95, v94, vcc
    v_add_u32 v94, 32, v90
    v_cndmask_b32 v94, v95, v94, vcc
    v_cmp_eq_u32 vcc, 0, v91
    v_cndmask_b32 v249, v95, v94, vcc
    s_waitcnt vmcnt(0)
    """)
    T(4)
    negm_frag(102, 100)
    for c in range(5):
        a(f"v_mfma_f32_32x32x8_bf16 v[{16*c}:{16*c+15}], v[{104+2*c}:{105+2*c}], v[102:103], v[{16*c}:{16*c+15}]")
    a("v_rcp_f32 v246, v101")
    def phi_frags(F, pair):
        for T in range(2):
            for q in range(5):
                a(f"ds_read_b64_tr_b16 v[{F+10*T+2*q}:{F+10*T+2*q+1}], v{248+T} offset:{pair*800 + 4*q*40}")
    def phi_mfma(D, F, B):
        for T in range(2):
            d = D + 16*T; f = F + 10*T
            a(f"v_mfma_f32_32x32x16_bf16 v[{d}:{d+15}], v[{f}:{f+3}], v[{B}:{B+3}], 0")
            a(f"v_mfma_f32_32x32x16_bf16 v[{d}:{d+15}], v[{f+4}:{f+7}], v[{B+4}:{B+7}], v[{d}:{d+15}]")
            a(f"v_mfma_f32_32x32x8_bf16 v[{d}:{d+15}], v[{f+8}:{f+9}], v[{B+8}:{B+9}], v[{d}:{d+15}]")
    P = lambda r: f"v[{r}:{r+1}]"
    a(f"""
    s_cmp_eq_u32 {ROLE}, 2
    s_cbranch_scc1 K1_QEPI
    """)
    phi_frags(120, 0); phi_frags(140, 1)
    for p in range(20): a(f"v_cvt_pk_bf16_f32 v{80+p}, v{2*p}, v{2*p+1}")
    a("s_waitcnt lgkmcnt(0)")
    phi_mfma(160, 120, 80); phi_mfma(192, 140, 90)
    a(f"""
    v_mul_f32 v244, {f2u(LOG2E)}, v246
    v_sub_f32 v245, 0, v244               ; (c, -c)
    v_lshrrev_b32 v93, 5, {LANE}
    v_mul_u32_u24 v93, {4*18432}, v93
    v_and_b32 v94, 31, {LANE}
    v_add_u32 v94, {T2}, v94
    v_mul_u32_u24 v94, 144, v94
    v_add_u32 v93, v93, v94
    s_mul_i32 s3, {T1}, {2*18432}
    v_add_u32 v243, s3, v93
    s_barrier
    """)
    T(5)
    for i in range(2):
        L = 160 + 32*i; O = 100
        V = 40 + 20*i
        for p in range(10): a(f"v_pk_mul_f32 {P(V+2*p)}, {P(V+2*p)}, {P(246)} op_sel_hi:[1,0]")
        a(f"v_max3_f32 v90, v{L}, v{L+1}, v{L+2}\nv_min3_f32 v91, v{L}, v{L+1}, v{L+2}")
        for p in range(3, 19, 2):
            a(f"v_max3_f32 v90, v90, v{L+p}, v{L+p+1}\nv_min3_f32 v91, v91, v{L+p}, v{L+p+1}")
        a(f"v_max_f32 v90, v90, v{L+19}\nv_min_f32 v91, v91, v{L+19}")
        a(f"v_mul_f32 v90, v245, v90\nv_mul_f32 v91, v244, v91")
        for p in range(10): a(f"v_cvt_pk_bf16_f32 v{O+20+p}, v{V+2*p}, v{V+2*p+1}")
        for p in range(10):
            a(f"v_pk_fma_f32 {P(2*p)}, {P(L+2*p)}, {P(244)}, {P(90)} op_sel:[0,0,0] op_sel_hi:[1,0,0]")
            a(f"v_pk_fma_f32 {P(20+2*p)}, {P(L+2*p)}, {P(244)}, {P(90)} op_sel:[0,1,1] op_sel_hi:[1,1,1]")
        for p in range(40): a(f"v_exp_f32 v{p}, v{p}")
        a(f"v_pk_add_f32 {P(92)}, {P(0)}, {P(2)}\nv_pk_add_f32 {P(94)}, {P(20)}, {P(22)}")
        for p in range(2, 10):
            a(f"v_pk_add_f32 {P(92)}, {P(92)}, {P(2*p)}\nv_pk_add_f32 {P(94)}, {P(94)}, {P(20+2*p)}")
        a("v_add_f32 v92, v92, v93\nv_add_f32 v93, v94, v95\nv_rcp_f32 v92, v92\nv_rcp_f32 v93, v93")
        a(f"v_mov_b32 v{O+30}, 0x3f80\nv_mov_b32 v{O+31}, 0")
        for p in range(10):
            a(f"v_pk_mul_f32 {P(2*p)}, {P(2*p)}, {P(92)} op_sel:[0,0] op_sel_hi:[1,0]")
            a(f"v_pk_mul_f32 {P(20+2*p)}, {P(20+2*p)}, {P(92)} op_sel:[0,1] op_sel_hi:[1,1]")
        order = [0,1,2,3,8, 10,11,12,13,18, 4,5,6,7,9, 14,15,16,17,19]
        for n, p in enumerate(order): a(f"v_cvt_pk_bf16_f32 v{O+n}, v{2*p}, v{2*p+1}")
        for q in range(8): a(f"ds_write_b128 v243, v[{O+4*q}:{O+4*q+3}] offset:{i*18432 + 16*q}")
    a(f"""
    v_bfe_u32 v90, {LANE}, 2, 2           ; r
    v_lshrrev_b32 v91, 5, {LANE}          ; hh
    v_lshl_add_u32 v90, v91, 3, v90
    v_mul_u32_u24 v90, 144, v90
    v_and_b32 v92, 3, {LANE}
    v_bfe_u32 v93, {LANE}, 4, 1
    v_lshl_add_u32 v92, v93, 2, v92
    v_lshl_add_u32 v90, v92, 3, v90
    s_mul_i32 s3, {WAVE}, 18432
    v_add_u32 v90, s3, v90
    v_and_b32 v92, 31, {LANE}
    v_mul_u32_u24 v91, 24, v91
    v_add_u32 v91, v91, v92
    v_lshlrev_b32 v91, 4, v91
    v_mov_b32 v93, 0x40000000
    v_cmp_gt_u32 vcc, 24, v92
    v_cndmask_b32 v91, v93, v91, vcc
    s_lshl_b32 s3, {COL}, 3
    s_add_u32 s3, s3, {WAVE}
    s_lshl_b32 s3, s3, 4
    s_add_u32 s3, s3, {RB}
    s_mul_i32 s3, s3, 3840
    s_add_u32 s3, s3, {OFF_P}
    s_waitcnt lgkmcnt(0)
    s_barrier
    """)
    T(6)
    for s in range(8):
        F = 100 + 12*s
        for n, off in enumerate([0, 64, 80]):
            for i in range(2):
                a(f"ds_read_b64_tr_b16 v[{F+4*n+2*i}:{F+4*n+2*i+1}], v90 offset:{(16*s+4*i)*144 + off}")
        if s >= 1:
            G = 100 + 12*(s-1)
            a("s_waitcnt lgkmcnt(6)")
            c0 = "0" if s == 1 else "v[0:15]"; c1 = "0" if s == 1 else "v[16:31]"
            a(f"v_mfma_f32_32x32x16_bf16 v[0:15], v[{G}:{G+3}], v[{G+8}:{G+11}], {c0}")
            a(f"v_mfma_f32_32x32x16_bf16 v[16:31], v[{G+4}:{G+7}], v[{G+8}:{G+11}], {c1}")
    G = 100 + 84
    a("s_waitcnt lgkmcnt(0)")
    a(f"v_mfma_f32_32x32x16_bf16 v[0:15], v[{G}:{G+3}], v[{G+8}:{G+11}], v[0:15]")
    a(f"v_mfma_f32_32x32x16_bf16 v[16:31], v[{G+4}:{G+7}], v[{G+8}:{G+11}], v[16:31]")
    for g in range(5):
        a(f"buffer_store_dwordx4 v[{4*g}:{4*g+3}], v91, {sWS}, s3 offen offset:{g*768} {opt.get('st','')}")
    a("s_branch K1_FIN")

    a.label("K1_QEPI")
    phi_frags(120, 0); phi_frags(140, 1)
    for p in range(40): a(f"v_cvt_pk_bf16_f32 v{80+p}, v{2*p}, v{2*p+1}")
    a(f"""
    v_lshrrev_b32 v0, 5, {LANE}
    v_and_b32 v1, 31, {LANE}
    v_lshlrev_b32 v2, 19, v0              ; 8 heads * 65536
    v_lshl_add_u32 v244, v1, 4, v2
    v_lshlrev_b32 v2, 17, v0              ; 8 heads * 16384
    v_lshl_add_u32 v245, v1, 3, v2
    s_lshl_b32 s3, {COL}, 2
    s_add_u32 s3, s3, {T1}
    s_lshl_b32 s3, s3, 2
    s_lshl_b32 s3, s3, 6
    s_lshl_b32 s4, {RB}, 2
    s_add_u32 s4, s4, {T0}
    s_add_u32 s3, s3, s4
    s_lshl_b32 s5, s3, 10
    s_add_u32 s5, s5, {OFF_PQA}
    s_lshl_b32 s6, s3, 8
    s_add_u32 s6, s6, {OFF_PQC}
    s_waitcnt lgkmcnt(0)
    """)
    phi_mfma(160, 120, 80); phi_mfma(192, 140, 90)
    phi_frags(120, 2); phi_frags(140, 3)
    def qout(L, O):
        for p in range(10): a(f"v_pk_mul_f32 {P(L+2*p)}, {P(L+2*p)}, {P(246)} op_sel_hi:[1,0]")
        for p in range(10): a(f"v_cvt_pk_bf16_f32 v{O+p}, v{L+2*p}, v{L+2*p+1}")
        a(f"""
        buffer_store_dwordx4 v[{O}:{O+3}], v244, {sWS}, s5 offen {opt.get('st','')}
        buffer_store_dwordx4 v[{O+4}:{O+7}], v244, {sWS}, s5 offen offset:512 {opt.get('st','')}
        buffer_store_dwordx2 v[{O+8}:{O+9}], v245, {sWS}, s6 offen {opt.get('st','')}
        s_add_u32 s5, s5, 65536
        s_add_u32 s6, s6, 16384
        """)
    a("s_waitcnt lgkmcnt(0)")
    phi_mfma(0, 120, 100); phi_mfma(32, 140, 110)
    qout(160, 64); qout(192, 224); qout(0, 64); qout(32, 224)
    a("s_branch K1_FIN")

    def colsum_loads(nl, base):
        a(f"""
        v_lshrrev_b32 v1, 3, {LANE}
        s_mul_i32 s3, {WAVE}, 80
        v_add_u32 v1, s3, v1
        v_mul_lo_u32 v1, v1, {WSTR}
        v_and_b32 v2, 7, {LANE}
        v_lshl_add_u32 v245, v2, 4, v1
        s_lshl_b32 s5, {WSTR}, 3
        """)
        for l in range(nl):
            a(f"""
            s_add_u32 s4, {T0}, {l}
            s_lshl_b32 s4, s4, 7
            s_cmp_gt_u32 {T1}, {l}
            s_cselect_b32 s26, s26, 0
            """)
            for i in range(10):
                r = base + 40*l + 4*i
                a(f"buffer_load_dwordx4 v[{r}:{r+3}], v245, {sA}, s4 offen\ns_add_u32 s4, s4, s5")
    def colsum_acc(nl, base, accb):
        a(f"s_mov_b32 s6, 0x00003f80\ns_mov_b32 s7, 0x3f800000")
        a(f"""
        v_lshlrev_b32 v246, 5, {LANE}
        s_lshl_b32 s3, {WAVE}, 11
        v_add_u32 v246, s3, v246
        """)
        for l in range(nl):
            A = accb + 8*l
            for r in range(8): a(f"v_mov_b32 v{A+r}, 0")
            for i in range(10):
                a(f"s_waitcnt vmcnt({10*(nl-1-l) + 9 - i})")
                r = base + 40*l + 4*i
                for q in range(4):
                    a(f"v_dot2c_f32_bf16 v{A+2*q}, s6, v{r+q}\nv_dot2c_f32_bf16 v{A+2*q+1}, s7, v{r+q}")
            a(f"ds_write_b128 v246, v[{A}:{A+3}] offset:{l*16384}\nds_write_b128 v246, v[{A+4}:{A+7}] offset:{l*16384+16}")
    def colsum_fin(tag, gl):
        a(f"""
        s_waitcnt lgkmcnt(0)
        s_barrier
        s_cmp_ge_u32 {WAVE}, {T1}
        s_cbranch_scc1 {tag}_CSDONE
        s_lshl_b32 s3, {WAVE}, 14
        v_lshl_add_u32 v1, {LANE}, 2, s3
        """)
        for e in range(32): a(f"ds_read2st64_b32 v[{10+2*e}:{11+2*e}], v1 offset0:{2*e} offset1:{2*e+1}")
        a("s_waitcnt lgkmcnt(0)")
        n = 32
        while n > 1:
            for e in range(n//2): a(f"v_pk_add_f32 {P(10+2*e)}, {P(10+2*e)}, {P(10+2*(e+n//2))}")
            n //= 2
        a(f"""
        v_add_f32 v10, v10, v11
        v_cvt_pk_bf16_f32 v2, v10, v10
        v_and_b32 v3, 0xffff0000, v2
        v_sub_f32 v10, v10, v3
        v_cvt_pk_bf16_f32 v4, v10, v10
        v_and_b32 v3, 0xffff0000, v4
        v_sub_f32 v10, v10, v3
        v_and_b32 v2, 0xffff, v2
        v_or_b32 v4, v2, v3
        v_mov_b32 v3, 0
        v_cvt_pk_bf16_f32 v5, v10, v3
        s_add_u32 s3, {gl}, {WAVE}
        s_lshl_b32 s3, s3, 9
        s_add_u32 s3, s3, {OFF_CS}
        v_lshlrev_b32 v1, 3, {LANE}
        buffer_store_dwordx2 v[4:5], v1, {sWS}, s3 offen sc0 sc1
{tag}_CSDONE:
        s_waitcnt vmcnt(0)
        s_barrier
        s_cmp_lg_u32 {WAVE}, 0
        s_cbranch_scc1 {tag}_SIG
        v_mov_b32 v1, 0
        v_mov_b32 v2, 1
        s_mov_b64 exec, 1
        buffer_atomic_add v2, v1, {sDBG}, 0 offen
        s_mov_b64 exec, -1
{tag}_SIG:
        """)
    a.label("K1_QAUX")
    a(f"""
    s_bfe_u32 {T0}, {PAR}, 0x80008
    s_bfe_u32 {T1}, {PAR}, 0x80010
    s_mov_b32 {WSTR}, 3840
    """)
    colsum_loads(1, 10); colsum_acc(1, 10, 160); colsum_fin("K1QA", T0); T(7)
    a("s_branch K1_GEMM")

    a.label("K1_SPARE")
    a(f"""
    s_bfe_u32 {T2}, {PAR}, 0x80008
    s_bfe_u32 {T1}, {PAR}, 0x80010
    s_mov_b32 {WSTR}, 3456
    s_cmp_lt_u32 {T2}, 57
    s_cselect_b32 s24, {lo(pG)}, {lo(pU)}
    s_cselect_b32 s25, {hi(pG)}, {hi(pU)}
    s_cselect_b32 s3, 30, 57
    s_mov_b32 s26, {640*3456}
    s_sub_u32 {T0}, {T2}, s3
    ; x rows
    v_lshrrev_b32 v1, 3, {LANE}
    s_lshl_b32 s3, {RB}, 7
    s_lshl_b32 s4, {WAVE}, 4
    s_add_u32 s3, s3, s4
    v_add_u32 v247, s3, v1
    v_mul_u32_u24 v1, 1280, v247
    v_and_b32 v2, 7, {LANE}
    v_lshl_add_u32 v244, v2, 4, v1
    s_mov_b32 s4, {8*1280}
    """)
    for h in range(2):
        for i in range(10):
            r = 164 + 40*h + 4*i
            a(f"buffer_load_dwordx4 v[{r}:{r+3}], v244, {sX}, {'s4' if h else '0'} offen offset:{128*i}")
    colsum_loads(4, 4)
    a("s_mov_b32 s6, 0x3f803f80")
    for h in range(2):
        S, Q = ('v248', 'v249') if h == 0 else ('v251', 'v252')
        a(f"v_mov_b32 {S}, 0\nv_mov_b32 {Q}, 0")
        for i in range(10):
            a(f"s_waitcnt vmcnt({40 + 10*(1-h) + 9 - i})")
            r = 164 + 40*h + 4*i
            for q in range(4): a(f"v_dot2c_f32_bf16 {S}, s6, v{r+q}\nv_dot2c_f32_bf16 {Q}, v{r+q}, v{r+q}")
    for h in range(2):
        S, Q = ('v248', 'v249') if h == 0 else ('v251', 'v252')
        for m in ["quad_perm:[1,0,3,2]", "quad_perm:[2,3,0,1]", "row_half_mirror"]:
            a(f"v_add_f32_dpp {S}, {S}, {S} {m} row_mask:0xf bank_mask:0xf\nv_add_f32_dpp {Q}, {Q}, {Q} {m} row_mask:0xf bank_mask:0xf")
        o = 164 + 2*h
        a(f"""
        v_mul_f32 {S}, {f2u(1/640)}, {S}
        v_mul_f32 v1, {S}, {S}
        v_mul_f32 {Q}, {f2u(1/640)}, {Q}
        v_sub_f32 {Q}, {Q}, v1
        v_max_f32 {Q}, 0, {Q}
        v_sub_f32 {S}, 0, {S}
        v_cvt_pk_bf16_f32 v{o}, {S}, {S}
        v_cvt_pk_bf16_f32 v1, {Q}, {Q}
        v_and_b32 v1, 0xffff0000, v1
        v_add_f32 v1, {f2u(1e-5)}, v1
        v_cvt_pk_bf16_f32 v1, v1, v1
        v_and_b32 v1, 0xffff0000, v1
        v_sqrt_f32 v1, v1
        v_cvt_pk_bf16_f32 v1, v1, v1
        v_and_b32 v{o+1}, 0xffff0000, v1
        """)
    T(1)
    colsum_acc(4, 4, 172)
    T(2)
    a(f"""
    v_lshlrev_b32 v1, 3, v247
    s_mov_b32 s4, {OFF_ST}
    buffer_store_dwordx2 v[164:165], v1, {sWS}, s4 offen sc0 sc1
    buffer_store_dwordx2 v[166:167], v1, {sWS}, s4 offen offset:64 sc0 sc1
    """)
    colsum_fin("K1S", T2)
    T(3)
    a(f"""
    s_lshl_b32 {T0}, {RB}, 3
    s_add_u32 {T0}, {T0}, {WAVE}
    v_lshrrev_b32 v1, 3, {LANE}           ; row8
    v_and_b32 v2, 7, {LANE}
    v_lshlrev_b32 v2, 4, v2
    v_mul_u32_u24 v3, 1280, v1
    v_add_u32 v240, v3, v2
    v_lshrrev_b32 v3, 2, v1
    v_mul_u32_u24 v3, {16*1280}, v3
    v_add_u32 v241, v240, v3
    v_lshrrev_b32 v1, 4, {LANE}
    v_bfe_u32 v2, {LANE}, 2, 2
    v_lshl_add_u32 v1, v1, 3, v2
    v_and_b32 v2, 3, {LANE}
    v_lshlrev_b32 v2, 3, v2
    v_lshl_add_u32 v1, v1, 7, v2
    s_lshl_b32 {MW}, {WAVE}, 12
    s_add_u32 {MW}, {MW}, 65536
    v_add_u32 v242, {MW}, v1
    v_lshlrev_b32 v243, 4, {LANE}
K1_RL:
    s_cmp_ge_u32 {T0}, 740
    s_cbranch_scc1 K1_FIN
    s_mul_i32 {T1}, {T0}, 6554
    s_lshr_b32 {T1}, {T1}, 16             ; ks
    s_mul_i32 s3, {T1}, 10
    s_sub_u32 {T2}, {T0}, s3              ; line
    s_lshl_b32 {T3}, {T2}, 7
    s_cmp_ge_u32 {T1}, 54
    s_cbranch_scc1 K1_RLWO
    """)
    srd(a, sA, pD, 1728*1280)
    a(f"""
    s_mul_i32 s3, {T1}, {32*1280}
    s_add_u32 s3, s3, {T3}
    """)
    for g in range(4):
        a(f"s_add_u32 m0, {MW}, {g*1024}\nbuffer_load_dwordx4 v240, {sA}, s3 offen lds\ns_add_u32 s3, s3, {8*1280}")
    a("s_branch K1_RLGO")
    a.label("K1_RLWO")
    srd(a, sA, pWO, 640*1280)
    for g in range(4):
        a(f"""
        s_sub_u32 s3, {T1}, 54
        s_lshl_b32 s3, s3, 2
        s_add_u32 s3, s3, {g}                 ; octet
        s_mul_i32 s4, s3, 205
        s_lshr_b32 s4, s4, 10                 ; pair = o/5
        s_mul_i32 s5, s4, 5
        s_sub_u32 s5, s3, s5                  ; w
        s_mul_i32 s4, s4, 40
        s_lshr_b32 s6, s5, 1
        s_mul_i32 s6, s6, 20
        s_and_b32 s7, s5, 1
        s_lshl_b32 s7, s7, 3
        s_add_u32 s6, s6, s7
        s_cmp_eq_u32 s5, 4
        s_cselect_b32 s6, 16, s6
        s_cselect_b64 vcc, -1, 0
        s_add_u32 s4, s4, s6
        s_mul_i32 s4, s4, 1280
        s_add_u32 s4, s4, {T3}
        v_cndmask_b32 v1, v240, v241, vcc
        s_add_u32 m0, {MW}, {g*1024}
        buffer_load_dwordx4 v1, {sA}, s4 offen lds
        """)
    a.label("K1_RLGO")
    a("s_waitcnt vmcnt(0)")
    for m in range(4):
        for i in range(2):
            a(f"ds_read_b64_tr_b16 v[{8+4*m+2*i}:{9+4*m+2*i}], v242 offset:{i*512 + m*32}")
    a(f"s_mul_i32 s7, {T1}, 5120\ns_add_u32 s7, s7, {OFF_W2}")
    for m in range(4):
        a(f"""
        s_lshl_b32 s3, {T2}, 2
        s_add_u32 s3, s3, {m}
        s_mul_i32 s4, s3, 52
        s_lshr_b32 s4, s4, 8                  ; ct
        s_mul_i32 s5, s4, 5
        s_sub_u32 s5, s3, s5
        s_mul_i32 s4, s4, {W2_CT}
        s_lshl_b32 s5, s5, 10
        s_add_u32 s4, s4, s5
        s_add_u32 s4, s4, s7
        s_waitcnt lgkmcnt({6-2*m})
        buffer_store_dwordx4 v[{8+4*m}:{11+4*m}], v243, {sWS}, s4 offen {opt.get('st','')}
        """)
    a(f"""
    s_add_u32 {T0}, {T0}, 128
    s_branch K1_RL
    """)
    a.label("K1_FIN")
    T.finish(sWS, WAVE, WS_SIZE - 131072)
    a.label("K1_END")
    a("s_endpgm")
    a(".p2align 4\n.type K1_TAB,@object")
    a.label("K1_TAB")
    for e in k1_table(phase_fn): a(".long %d, %d, %d, %d" % e)
```

```python
from asmlib import Asm, Stamper
from layout import *
from k1 import f2u, LOG2E, srd, lo, hi
sH='s[8:11]'; sW='s[12:15]'; sWS='s[16:19]'; sDBG='s[20:23]'; sX='s[24:27]'; sO='s[28:31]'
WAVE='s32'; RB='s33'; CT='s34'; HEAD='s35'; TB='s36'; KH='s37'; KWW='s38'; KH0='s39'
pX='s[52:53]'; pOUT='s[56:57]'; pDBG='s[58:59]'; pWSp='s[60:61]'
LANE='v250'; V16='v251'; V16B='v252'
P = lambda r: f"v[{r}:{r+1}]"

def gen_k2(a, name="k2_kernel", stamp=False, opt={}):
    a(f".globl {name}\n.p2align 8\n.type {name},@function")
    a.label(name)
    a(f"""
    s_cmp_ge_u32 s2, 256
    s_cbranch_scc1 K2_END
    s_load_dwordx2 s[52:53], s[0:1], 0
    s_load_dwordx4 s[56:59], s[0:1], 64
    s_load_dwordx2 s[60:61], s[0:1], 80
    """)
    T = Stamper(a, stamp); T.start()
    a(f"""
    v_and_b32 {LANE}, 63, v0
    v_lshrrev_b32 v1, 6, v0
    v_readfirstlane_b32 {WAVE}, v1
    s_and_b32 s3, s2, 7                   ; xcd
    s_lshr_b32 s4, s2, 3                  ; j
    s_lshr_b32 s5, s3, 1
    s_lshl_b32 s5, s5, 3
    s_and_b32 s6, s4, 7
    s_add_u32 {RB}, s5, s6
    s_and_b32 s5, s3, 1
    s_lshl_b32 s5, s5, 2
    s_lshr_b32 s6, s4, 3
    s_add_u32 {CT}, s5, s6
    s_lshl_b32 s5, s3, 2
    s_and_b32 s6, s4, 3
    s_add_u32 {HEAD}, s5, s6
    s_lshr_b32 {TB}, s4, 2
    v_lshlrev_b32 {V16}, 4, {LANE}
    v_add_u32 {V16B}, 4096, {V16}
    v_and_b32 v240, 31, {LANE}            ; n
    v_lshrrev_b32 v241, 5, {LANE}         ; hh
    s_lshl_b32 s3, {WAVE}, 5
    v_add_u32 v242, s3, v240              ; item
    v_mul_u32_u24 v1, {8*3840}, v241
    v_lshl_add_u32 v1, v242, 4, v1
    v_mov_b32 v2, 0x40000000
    v_cmp_gt_u32 vcc, 240, v242
    v_cndmask_b32 v243, v2, v1, vcc
    s_mul_i32 s40, {HEAD}, {16*3840}
    s_add_u32 s40, s40, {OFF_P}
    s_lshl_b32 s3, {TB}, 3
    s_add_u32 s41, s3, {WAVE}             ; T32
    s_lshl_b32 s3, {HEAD}, 6
    s_add_u32 s3, s3, s41
    s_lshl_b32 s42, s3, 10
    s_add_u32 s42, s42, {OFF_PQA}
    s_lshl_b32 s43, s3, 8
    s_add_u32 s43, s43, {OFF_PQC}
    v_lshlrev_b32 v1, 3, v240
    v_lshl_add_u32 v244, v241, 2, v1
    s_mul_i32 s3, {WAVE}, 9
    s_mul_i32 s4, {WAVE}, 10
    s_sub_u32 s4, s4, 6
    s_cmp_ge_u32 {WAVE}, 6
    s_cselect_b32 s3, s4, s3              ; ks0
    s_mul_i32 {KH}, {RB}, {HO_RB}
    s_lshl_b32 s4, s3, 12
    s_add_u32 {KH}, {KH}, s4
    s_mov_b32 {KH0}, {KH}
    s_mul_i32 {KWW}, {CT}, {W2_CT}
    s_mul_i32 s4, s3, 5120
    s_add_u32 {KWW}, {KWW}, s4
    s_add_u32 {KWW}, {KWW}, {OFF_W2}
    s_waitcnt lgkmcnt(0)
    """)
    srd(a, sH, pWSp, WS_SIZE); srd(a, sW, pWSp, WS_SIZE); srd(a, sWS, pWSp, WS_SIZE); srd(a, sDBG, pDBG, 256)
    srd(a, sX, pX, 2621440); srd(a, sO, pOUT, 2621440)
    a(f"""
    s_cmp_ge_u32 {WAVE}, 6
    s_cselect_b32 s10, 0, s10
    buffer_load_dwordx4 v[32:35], {V16}, {sWS}, s42 offen
    buffer_load_dword v36, v244, {sWS}, s43 offen
    """)
    for i in range(8):
        a(f"buffer_load_dwordx4 v[{4*i}:{4*i+3}], v243, {sWS}, s40 offen\ns_add_u32 s40, s40, 3840")
    def hloads(d, kh=KH):
        B = 80 + 36*d
        for t in range(4): a(f"buffer_load_dwordx4 v[{B+20+4*t}:{B+23+4*t}], {V16}, {sH}, {kh} offen offset:{1024*t} sc1")
    def loads(d):
        B = 80 + 36*d
        for mt in range(4): a(f"buffer_load_dwordx4 v[{B+4*mt}:{B+4*mt+3}], {V16}, {sW}, {KWW} offen offset:{1024*mt}")
        a(f"buffer_load_dwordx4 v[{B+16}:{B+19}], {V16B}, {sW}, {KWW} offen")
        hloads(d)
        a(f"s_add_u32 {KH}, {KH}, 4096\ns_add_u32 {KWW}, {KWW}, 5120")
    loads(0)
    a(f"""
    v_mul_u32_u24 v224, 171, v242
    v_lshrrev_b32 v224, 12, v224          ; quad
    v_mul_u32_u24 v225, 24, v224
    v_sub_u32 v225, v242, v225            ; d
    v_mul_u32_u24 v225, 80, v225
    v_cmp_lt_u32 vcc, 4, v224
    v_cndmask_b32 v226, 0, 1, vcc         ; H
    v_mul_u32_u24 v227, 5, v226
    v_sub_u32 v224, v224, v227            ; qq
    v_lshrrev_b32 v227, 1, v224
    v_lshlrev_b32 v227, 5, v227
    v_and_b32 v228, 1, v224
    v_lshl_add_u32 v227, v228, 3, v227
    v_cmp_eq_u32 vcc, 4, v224
    v_cndmask_b32 v228, 4, 3, vcc
    v_lshlrev_b32 v226, v228, v226
    v_add3_u32 v245, v225, v226, v227
    v_mov_b32 v224, 4000
    v_cmp_gt_u32 vcc, 240, v242
    v_cndmask_b32 v245, v224, v245, vcc
    v_bfe_u32 v224, v240, 2, 1            ; Ho
    v_and_b32 v225, 3, v240
    v_lshrrev_b32 v226, 3, v240
    v_lshl_add_u32 v225, v226, 2, v225    ; g
    v_lshl_add_u32 v227, v224, 3, v225    ; 8Ho+g
    v_add_u32 v228, 8, v225
    v_cmp_lt_u32 vcc, 7, v225
    v_cndmask_b32 v227, v227, v228, vcc
    v_min_u32 v227, 20, v227
    v_mul_u32_u24 v227, 80, v227
    v_lshl_add_u32 v246, v241, 4, v227
    v_lshl_add_u32 v247, v241, 3, v227
    s_lshr_b32 s3, {HEAD}, 1
    s_mul_i32 s3, s3, 5
    s_and_b32 s4, {HEAD}, 1
    s_lshl_b32 s5, s4, 1
    s_add_u32 s5, s5, s3
    v_add_u32 v224, s5, v241              ; octet
    v_lshrrev_b32 v225, 2, v224
    v_and_b32 v224, 3, v224
    v_lshlrev_b32 v224, 8, v224
    v_lshl_add_u32 v224, v225, 12, v224
    v_and_b32 v225, 15, v240
    v_lshlrev_b32 v225, 4, v225
    v_lshrrev_b32 v226, 4, v240
    v_lshl_add_u32 v225, v226, 10, v225
    v_add_u32 v248, v224, v225
    s_add_u32 s3, s3, 4
    s_lshr_b32 s5, s3, 2
    s_lshl_b32 s5, s5, 12
    s_and_b32 s3, s3, 3
    s_lshl_b32 s3, s3, 8
    s_add_u32 s3, s3, s5
    s_lshl_b32 s4, s4, 3
    s_add_u32 s3, s3, s4
    v_add_u32 v225, s3, v225
    v_mov_b32 v224, 0x40000000
    v_cmp_gt_u32 vcc, 32, {LANE}
    v_cndmask_b32 v249, v224, v225, vcc
    s_lshr_b32 s3, s41, 1
    s_mul_i32 s44, s3, {HO_RB}
    s_and_b32 s3, s41, 1
    s_lshl_b32 s3, s3, 11
    s_add_u32 s44, s44, s3
    s_add_u32 s44, s44, {54*4096}
    s_waitcnt vmcnt(17)
    """)
    T(1)
    for p in range(5):
        a(f"v_lshlrev_b32 v{40+2*p}, 16, v{32+p}\nv_and_b32 v{41+2*p}, 0xffff0000, v{32+p}")
    a("v_max3_f32 v224, v40, v41, v42\nv_min3_f32 v225, v40, v41, v42")
    for p in range(3, 9, 2): a(f"v_max3_f32 v224, v224, v{40+p}, v{41+p}\nv_min3_f32 v225, v225, v{40+p}, v{41+p}")
    a(f"""
    v_max_f32 v224, v224, v49
    v_min_f32 v225, v225, v49
    v_mov_b32 v226, v224
    v_mov_b32 v227, v225
    v_permlane32_swap_b32 v224, v226
    v_permlane32_swap_b32 v225, v227
    v_max_f32 v224, v224, v226
    v_min_f32 v225, v225, v227
    v_mov_b32 v228, {f2u(LOG2E)}
    v_mov_b32 v229, {f2u(-LOG2E)}
    v_mul_f32 v224, v229, v224
    v_mul_f32 v225, v228, v225
    """)
    for p in range(5):
        a(f"v_pk_fma_f32 {P(50+2*p)}, {P(40+2*p)}, {P(228)}, {P(224)} op_sel:[0,0,0] op_sel_hi:[1,0,0]")
        a(f"v_pk_fma_f32 {P(60+2*p)}, {P(40+2*p)}, {P(228)}, {P(224)} op_sel:[0,1,1] op_sel_hi:[1,1,1]")
    for p in range(20): a(f"v_exp_f32 v{50+p}, v{50+p}")
    a("s_waitcnt vmcnt(9)")
    T(2)
    for n in (4, 2, 1):
        for i in range(n):
            for q in range(2): a(f"v_pk_add_f32 {P(4*i+2*q)}, {P(4*i+2*q)}, {P(4*(i+n)+2*q)}")
    for q in range(4): a(f"v_mov_b32 v{4+q}, v{q}")
    for q in range(4): a(f"v_permlane32_swap_b32 v{q}, v{4+q}")
    a(f"""
    v_pk_add_f32 v[0:1], v[0:1], v[4:5]
    v_pk_add_f32 v[2:3], v[2:3], v[6:7]
    v_cvt_pk_bf16_f32 v0, v0, v1
    v_cvt_pk_bf16_f32 v1, v2, v3
    ds_write_b64 v245, v[0:1]
    """)
    loads(1)
    a(f"v_pk_add_f32 {P(224)}, {P(50)}, {P(52)}\nv_pk_add_f32 {P(226)}, {P(60)}, {P(62)}")
    for p in range(2, 5): a(f"v_pk_add_f32 {P(224)}, {P(224)}, {P(50+2*p)}\nv_pk_add_f32 {P(226)}, {P(226)}, {P(60+2*p)}")
    a(f"""
    v_add_f32 v224, v224, v225
    v_add_f32 v225, v226, v227
    v_mov_b32 v226, v224
    v_mov_b32 v227, v225
    v_permlane32_swap_b32 v224, v226
    v_permlane32_swap_b32 v225, v227
    v_add_f32 v224, v224, v226
    v_add_f32 v225, v225, v227
    v_rcp_f32 v224, v224
    v_rcp_f32 v225, v225
    s_waitcnt lgkmcnt(0)
    s_barrier
    ds_read_b128 v[0:3], v246
    ds_read_b128 v[4:7], v246 offset:32
    ds_read_b64 v[8:9], v247 offset:64
    """)
    for p in range(5):
        a(f"v_pk_mul_f32 {P(50+2*p)}, {P(50+2*p)}, {P(224)} op_sel:[0,0] op_sel_hi:[1,0]")
        a(f"v_pk_mul_f32 {P(60+2*p)}, {P(60+2*p)}, {P(224)} op_sel:[0,1] op_sel_hi:[1,1]")
    for p in range(10): a(f"v_cvt_pk_bf16_f32 v{70+p}, v{50+2*p}, v{51+2*p}")
    a(f"""
    s_waitcnt lgkmcnt(0)
    v_mfma_f32_32x32x16_bf16 v[16:31], v[0:3], v[70:73], 0
    v_mfma_f32_32x32x16_bf16 v[16:31], v[4:7], v[74:77], v[16:31]
    v_mfma_f32_32x32x8_bf16 v[16:31], v[8:9], v[78:79], v[16:31]
    v_add_f32 v28, {f2u(1e-6)}, v28
    v_rcp_f32 v28, v28
    """)
    for p in range(6): a(f"v_pk_mul_f32 {P(16+2*p)}, {P(16+2*p)}, {P(28)} op_sel:[0,0] op_sel_hi:[1,0]")
    for p in range(6): a(f"v_cvt_pk_bf16_f32 v{224+p}, v{16+2*p}, v{17+2*p}")
    a(f"""
    buffer_store_dwordx4 v[224:227], v248, {sWS}, s44 offen sc0 sc1
    buffer_store_dwordx2 v[228:229], v249, {sWS}, s44 offen sc0 sc1
    """)
    T(3)
    loads(2)
    T(4)
    a("s_waitcnt vmcnt(9)")
    T(5)
    a(f"""
    s_barrier
    s_cmp_lg_u32 {WAVE}, 7
    s_cbranch_scc1 K2_NOSIG
    s_lshl_b32 s3, {TB}, 5
    v_mov_b32 v230, s3
    v_mov_b32 v231, 1
    s_mov_b64 exec, 1
    buffer_atomic_add v231, v230, {sDBG}, 0 offen
    s_mov_b64 exec, -1
K2_NOSIG:
    """)
    loads(3)
    T(6)
    a(f"""
    s_cmp_lt_u32 {WAVE}, 6
    s_cbranch_scc1 K2_GO
    s_lshr_b32 s3, {RB}, 2
    s_lshl_b32 s3, s3, 5
    v_mov_b32 v230, s3
K2_POLL:
    buffer_load_dword v231, v230, {sDBG}, 0 offen sc1
    s_waitcnt vmcnt(0)
    v_readfirstlane_b32 s3, v231
    s_cmp_ge_u32 s3, 32
    s_cbranch_scc1 K2_POLLED
    s_sleep 4
    s_branch K2_POLL
K2_POLLED:
    s_mov_b32 s10, {WS_SIZE}
    """)
    T(7)
    for d in range(4):
        hloads(d, KH0); a(f"s_add_u32 {KH0}, {KH0}, 4096")
    a("s_waitcnt vmcnt(0)")
    a.label("K2_GO")
    for st in range(10):
        d = st % 4; B = 80 + 36*d
        a(f"s_waitcnt vmcnt({9*min(3, 9-st)})")
        for mt in range(5):
            for t in range(4):
                c = 4*(t*5+mt)
                a(f"v_mfma_f32_16x16x32_bf16 v[{c}:{c+3}], v[{B+4*mt}:{B+4*mt+3}], v[{B+20+4*t}:{B+23+4*t}], {'0' if st==0 else f'v[{c}:{c+3}]'}")
        if st + 4 < 10:
            if st + 4 == 9:
                a(f"s_cmp_lt_u32 {WAVE}, 6\ns_cselect_b32 s10, 0, s10\ns_cselect_b32 s14, 0, s14")
            loads(d)
    T(8)
    a(f"""
    v_and_b32 v224, 15, {LANE}
    v_mul_u32_u24 v224, 1280, v224
    v_lshrrev_b32 v225, 4, {LANE}
    v_lshl_add_u32 v224, v225, 3, v224
    s_lshl_b32 s3, {RB}, 6
    s_mul_i32 s3, s3, 1280
    s_mul_i32 s4, {CT}, 160
    s_add_u32 s45, s3, s4
    """)
    for i in range(3):
        a(f"""
        s_add_u32 s3, {WAVE}, {8*i}
        s_mul_i32 s4, s3, 52
        s_lshr_b32 s4, s4, 8                  ; tt
        s_mul_i32 s5, s4, 5
        s_sub_u32 s5, s3, s5                  ; mt
        s_mul_i32 s4, s4, {16*1280}
        s_lshl_b32 s5, s5, 5
        s_add_u32 s4, s4, s5
        s_add_u32 s{46+i}, s4, s45
        """)
        if i == 2:
            a(f"s_cmp_ge_u32 {WAVE}, 4\ns_cselect_b32 s26, 0, s26")
        a(f"buffer_load_dwordx2 v[{226+2*i}:{227+2*i}], v224, {sX}, s{46+i} offen")
    a(f"""
    s_mul_i32 s3, {WAVE}, 20480
    v_add_u32 v232, s3, {V16}
    """)
    for t in range(20): a(f"ds_write_b128 v232, v[{4*t}:{4*t+3}] offset:{1024*t}")
    a(f"""
    s_lshl_b32 s3, {WAVE}, 10
    v_add_u32 v232, s3, {V16}
    v_add_u32 v233, {3*20480}, v232
    v_add_u32 v234, {6*20480}, v232
    s_waitcnt lgkmcnt(0)
    s_barrier
    """)
    for i in range(3):
        if i == 2: a(f"s_cmp_ge_u32 {WAVE}, 4\ns_cbranch_scc1 K2_FIN")
        R = 80 + 32*i
        for w in range(8):
            a(f"ds_read_b128 v[{R+4*w}:{R+4*w+3}], v{232+w//3} offset:{(w%3)*20480 + i*8192}")
        a("s_waitcnt lgkmcnt(0)")
        for q in range(2):
            o = 2*q
            a(f"""
            v_pk_add_f32 {P(R+o)}, {P(R+o)}, {P(R+4+o)}
            v_pk_add_f32 {P(R+8+o)}, {P(R+8+o)}, {P(R+12+o)}
            v_pk_add_f32 {P(R+16+o)}, {P(R+16+o)}, {P(R+20+o)}
            v_pk_add_f32 {P(R+24+o)}, {P(R+24+o)}, {P(R+28+o)}
            v_pk_add_f32 {P(R+o)}, {P(R+o)}, {P(R+8+o)}
            v_pk_add_f32 {P(R+o)}, {P(R+o)}, {P(R+16+o)}
            """)
        for q in range(4): a(f"v_mul_f32 v{R+4+q}, {f2u(-LOG2E)}, v{R+q}")
        for q in range(4): a(f"v_exp_f32 v{R+4+q}, v{R+4+q}")
        for q in range(4): a(f"v_mul_f32 v{R+q}, v{R+q}, v{R+24+q}")
        for q in range(4): a(f"v_add_f32 v{R+4+q}, 1.0, v{R+4+q}")
        for q in range(4): a(f"v_rcp_f32 v{R+4+q}, v{R+4+q}")
        if i == 0: a("s_waitcnt vmcnt(0)")
        X = 226 + 2*i
        a(f"""
        v_lshlrev_b32 v{R+8}, 16, v{X}
        v_and_b32 v{R+9}, 0xffff0000, v{X}
        v_lshlrev_b32 v{R+10}, 16, v{X+1}
        v_and_b32 v{R+11}, 0xffff0000, v{X+1}
        """)
        for q in range(4): a(f"v_fmac_f32 v{R+8+q}, v{R+q}, v{R+4+q}")
        a(f"""
        v_cvt_pk_bf16_f32 v{R+12}, v{R+8}, v{R+9}
        v_cvt_pk_bf16_f32 v{R+13}, v{R+10}, v{R+11}
        buffer_store_dwordx2 v[{R+12}:{R+13}], v224, {sO}, s{46+i} offen
        """)
    a.label("K2_FIN")
    T.finish(sWS, WAVE, WS_SIZE - 262144)
    a.label("K2_END")
    a("s_endpgm")
```

```python
from asmlib import Asm, Stamper
from layout import *
import struct
WSLOT = 24576; XBASE = 98304; PHIB = 147456
SYNC = 163584
L_GOH, L_GOS, L_IMG, L_O, L_D = SYNC, SYNC+4, SYNC+8, SYNC+12, SYNC+16
L_ST = SYNC + 64
IMG = 7*20480 + 15360
C0 = -2.0*0.7978845608028654*1.4426950408889634
LOG2E = 1.4426950408889634
def f2u(f): return "0x%08x" % struct.unpack("<I", struct.pack("<f", f))[0]
P = lambda r: f"v[{r}:{r+1}]"
Q4 = lambda r: f"v[{r}:{r+3}]"
DEFSTAMPS = ['bar0','loopend','pub','fh','fkv','osig','fo','gemmend']

def table(opt={}):
    quarters = [[('S',0),('C',0),('C',1),('KV',0)],
                [('Q',0),('C',2),('C',3),('KV',1)],
                [('Q',1),('C',4),('C',5),('KV',2)],
                [('C',6),('C',7),('C',8),('KV',3)]]
    rolen = {'C':0,'KV':1,'Q':2,'S':3}
    tab = []
    for wg in range(256):
        xcd = wg & 7; j = wg >> 3
        R = xcd & 1; Cq = xcd >> 1
        role, col = quarters[Cq][j >> 3]
        rb = R*8 + (j & 7)
        cid = {'C':col, 'KV':9+col, 'Q':13+col, 'S':15}[role]
        r8 = rb & 7
        ph = (r8 % 3) if R == 0 else 3 + (r8 % 2)
        duty = (r8 // 3) if R == 0 else (r8 // 2)
        ph = (ph + opt.get("rot", 0)*Cq) % 5
        u0 = 2*ph
        if opt.get("noskew"): u0 = 0
        if role != 'C' and opt.get("qkv0"): u0 = 0
        dc = 2*duty + 2 if (role == 'C' and duty < 2 and not opt.get("noduty")) else 0
        dslab = (u0 + duty) % 10
        if opt.get("bmap", 0) == 0:
            rb64 = 8*(xcd >> 1) + (j & 7); ct = 4*(xcd & 1) + (j >> 3)
        else:
            rb64 = 4*xcd + (j & 3); ct = j >> 2
        head = 4*xcd + (j & 3); ob = j >> 2
        assert (role == 'KV') == (ob >= 6)
        tab.append((rolen[role], rb, col, u0 | (dc << 8) | (cid << 16) | (dslab << 24), rb64, ct, head, ob))
    return tab

sX='s[8:11]'; sW='s[12:15]'; sWS='s[16:19]'; sDBG='s[20:23]'; sA='s[32:35]'; sH='s[36:39]'
ROLE='s24'; RB='s25'; COL='s26'; PAR='s27'; RB64='s28'; CT='s29'; HEAD='s30'; OB='s31'
WAVE='s40'; KW='s41'; KX='s42'; DC='s43'; U1='s44'; WSTR='s45'; WSTEP='s46'; WEND='s47'
MW='s48'; MX='s49'; IT='s50'; PBASE='s51'; PREG='s60'; PA='s61'; PB='s70'
T0='s71'; T1='s72'; T2='s73'; T3='s74'; KWW='s75'; FLG='s76'; SPIN='s77'
pX='s[52:53]'; pQKV='s[54:55]'; pPHI='s[56:57]'; pWO='s[58:59]'; pG='s[62:63]'; pU='s[64:65]'; pD='s[66:67]'
pOUT='s[68:69]'; pDBG='s[70:71]'; pWSp='s[72:73]'
def lo(p): return 's' + p[2:].split(':')[0]
def hi(p): return 's' + p[2:-1].split(':')[1]
def srd(a, s, ptr, size):
    b = int(s[2:].split(':')[0])
    a(f"s_mov_b32 s{b}, {lo(ptr)}\ns_mov_b32 s{b+1}, {hi(ptr)}\ns_mov_b32 s{b+2}, {size}\ns_mov_b32 s{b+3}, 0x00020000")
LANE='v250'; V16='v251'; V16B='v252'; VZ='v254'
VW=['v240','v241','v242']; VX=['v243','v244']
WR = [146, 166, 186, 206]
TOK='s57'; VTOK='v245'
FL_AUX = OFF_FL + 768*128
OOB = "0x40000000"
SPINMAX = 100000

def gen(a, name, stamp=False, opt={}):
    T = Stamper(a, stamp); T.names = list(opt.get('stamps', DEFSTAMPS))
    a(f".globl {name}\n.p2align 8\n.type {name},@function")
    a.label(name)
    a(f"""
    s_cmp_ge_u32 s2, 256
    s_cbranch_scc1 KF_END
    s_load_dwordx16 s[52:67], s[0:1], 0
    s_load_dwordx4 s[68:71], s[0:1], 64
    s_load_dwordx2 s[72:73], s[0:1], 80
    s_getpc_b64 s[4:5]
KF_PC:
    s_lshl_b32 s3, s2, 5
    s_add_u32 s3, s3, KF_TAB-KF_PC
    s_load_dwordx8 s[24:31], s[4:5], s3
    """)
    T.start()
    a(f"""
    v_and_b32 {LANE}, 63, v0
    v_lshrrev_b32 v1, 6, v0
    v_readfirstlane_b32 {WAVE}, v1
    v_lshlrev_b32 {V16}, 4, {LANE}
    v_add_u32 {V16B}, 4096, {V16}
    v_mov_b32 {VZ}, 0
    v_lshrrev_b32 v1, 3, {LANE}           ; row8
    v_and_b32 v2, 7, {LANE}               ; pos
    v_lshrrev_b32 v3, 1, v1
    v_xor_b32 v4, v2, v3
    v_lshlrev_b32 v4, 4, v4
    s_lshl_b32 s3, {WAVE}, 4
    v_add_u32 v5, s3, v1
    v_mul_u32_u24 v5, 1280, v5
    v_add_u32 {VX[0]}, v5, v4
    v_xor_b32 v4, 64, v4
    v_add_u32 {VX[1]}, v5, v4
    v_add_u32 {VX[1]}, {8*1280}, {VX[1]}
    s_lshr_b32 s6, {WAVE}, 2              ; region
    s_and_b32 s7, {WAVE}, 3               ; kgroup
    s_mul_i32 {MW}, s6, 12288
    s_lshl_b32 s3, s7, 10
    s_add_u32 {MW}, {MW}, s3
    s_lshl_b32 {MX}, {WAVE}, 11
    s_add_u32 {MX}, {MX}, {XBASE}
    v_and_b32 v3, 1, v3
    s_lshl_b32 s3, s6, 1
    v_xor_b32 v3, s3, v3
    v_lshlrev_b32 v3, 1, v3
    v_xor_b32 v3, v2, v3                  ; c16 within unit
    s_lshl_b32 s3, s7, 3
    v_add_u32 v6, s3, v1                  ; k row
    """)
    for u in range(3):
        a(f"""
        v_add_u32 v4, {8*u}, v3
        v_mul_u32_u24 v5, 52, v4
        v_lshrrev_b32 v5, 8, v5               ; seg
        v_mul_u32_u24 v7, 5, v5
        v_sub_u32 v7, v4, v7
        v_lshlrev_b32 {VW[u]}, 3, v7
        v_and_b32 v{10+2*u}, 1, v5
        v_lshrrev_b32 v{11+2*u}, 1, v5
        """)
    a(f"""
    v_add_u32 v171, 1024, {V16}
    v_mov_b32 v255, {OOB}
    v_cmp_gt_u32 vcc, 16, {LANE}
    v_cndmask_b32 v171, v255, v171, vcc
    s_mov_b32 {SPIN}, 0
    s_waitcnt lgkmcnt(0)
    """)
    srd(a, sX, pX, 2621440); srd(a, sW, pQKV, 640*3840)
    srd(a, sWS, pWSp, WS_SIZE); srd(a, sDBG, pDBG, 256); srd(a, sA, pQKV, 640*3840); srd(a, sH, pWSp, WS_SIZE)
    a(f"""
    s_cmp_eq_u32 {ROLE}, 3
    s_cbranch_scc1 KF_SPARE
    """)
    T('gemm0')
    a(f"""
    s_and_b32 {T0}, {PAR}, 0xff
    s_mul_i32 s3, {RB}, {128*1280}
    v_add_u32 {VX[0]}, s3, {VX[0]}
    v_add_u32 {VX[1]}, s3, {VX[1]}
    s_lshl_b32 {KX}, {T0}, 7
    s_mov_b32 m0, {MX}
    s_mov_b32 {WSTR}, 3840
    buffer_load_dwordx4 {VX[0]}, {sX}, {KX} offen lds
    s_add_u32 m0, {MX}, 1024
    s_lshr_b32 {T1}, {WAVE}, 2            ; region
    buffer_load_dwordx4 {VX[1]}, {sX}, {KX} offen lds
    s_mov_b32 {PA}, 40
    s_mov_b32 {PB}, 80
    s_cmp_lg_u32 {ROLE}, 0
    s_cbranch_scc1 KF_SETQKV
    s_mov_b32 {WSTR}, 3456
    s_cmp_eq_u32 {T1}, 0
    s_cselect_b32 s12, {lo(pG)}, {lo(pU)}
    s_cselect_b32 s13, {hi(pG)}, {hi(pU)}
    s_mov_b32 s14, {640*3456}
    s_mul_i32 {PBASE}, {COL}, 192
    s_mov_b32 {PREG}, 0
    s_branch KF_SET2
KF_SETQKV:
    s_mul_i32 {PBASE}, {COL}, 320
    s_mov_b32 {PREG}, 160
    s_cmp_eq_u32 {ROLE}, 2
    s_cbranch_scc1 KF_SET2
    s_mul_i32 {PBASE}, {COL}, 160
    s_add_u32 {PBASE}, {PBASE}, 640
    s_mov_b32 {PREG}, 80
    s_mov_b32 {PA}, 640
    s_mov_b32 {PB}, 40
KF_SET2:
    s_mul_i32 {KW}, {T0}, {WSTR}
    s_lshl_b32 {KW}, {KW}, 6
    s_lshl_b32 {WSTEP}, {WSTR}, 5
    s_mul_i32 {WEND}, {WSTR}, 640
    v_mul_u32_u24 v6, {WSTR}, v6
    s_mul_i32 s3, {T1}, {PREG}
    s_add_u32 s3, s3, {PBASE}
    s_lshl_b32 s3, s3, 1
    v_add_u32 v6, s3, v6
    s_cmp_eq_u32 {ROLE}, 0
    s_cselect_b32 s3, 8, 4                ; valid chunk count in unit 2
    v_cmp_gt_u32 vcc, s3, v3
    """)
    for u in range(3):
        a(f"""
        v_mad_u32_u24 {VW[u]}, v{10+2*u}, {PA}, {VW[u]}
        v_mad_u32_u24 {VW[u]}, v{11+2*u}, {PB}, {VW[u]}
        v_lshl_add_u32 {VW[u]}, {VW[u]}, 1, v6
        """)
    a(f"v_cndmask_b32 {VW[2]}, v255, {VW[2]}, vcc")
    def adv_x(): a(f"s_add_u32 {KX}, {KX}, 128\ns_cmp_eq_u32 {KX}, 1280\ns_cselect_b32 {KX}, 0, {KX}")
    def adv_w(): a(f"s_add_u32 {KW}, {KW}, {WSTEP}\ns_cmp_eq_u32 {KW}, {WEND}\ns_cselect_b32 {KW}, 0, {KW}")
    def dma_w(slot):
        return [f"s_add_u32 m0, {MW}, {slot*WSLOT + u*4096}\nbuffer_load_dwordx4 {VW[u]}, {sW}, {KW} offen lds" for u in range(3)]
    def dma_x(xs):
        return [f"s_add_u32 m0, {MX}, {xs*16384 + i*1024}\nbuffer_load_dwordx4 {VX[i]}, {sX}, {KX} offen lds" for i in range(2)]
    for t in dma_w(0): a(t)
    adv_w(); adv_x()

    def sync_zero():
        a(f"v_lshlrev_b32 v1, 2, {LANE}\nv_add_u32 v1, {SYNC}, v1\nds_write_b32 v1, {VZ}")
    def stats_load():
        a(f"""
        s_bfe_u32 s3, {PAR}, 0x80010
        s_lshl_b32 s3, s3, 3
        s_lshl_b32 s5, {RB}, 7
        s_add_u32 s5, s5, s3
        s_add_u32 {U1}, s5, {WAVE}            ; row
        s_mul_i32 s3, {U1}, 1280
        buffer_load_dwordx4 v[160:163], {V16}, {sX}, s3 offen
        buffer_load_dwordx4 v[164:167], v171, {sX}, s3 offen
        """)
    def stats_calc():
        b = 160
        S, Qq, t = f"v{b+8}", f"v{b+9}", f"v{b+10}"
        a(f"s_mov_b32 s6, 0x3f803f80\nv_mov_b32 {S}, 0\nv_mov_b32 {Qq}, 0")
        for q in range(8): a(f"v_dot2c_f32_bf16 {S}, s6, v{b+q}\nv_dot2c_f32_bf16 {Qq}, v{b+q}, v{b+q}")
        for m in ["quad_perm:[1,0,3,2]", "quad_perm:[2,3,0,1]", "row_half_mirror", "row_mirror"]:
            a(f"v_add_f32_dpp {S}, {S}, {S} {m} row_mask:0xf bank_mask:0xf\nv_add_f32_dpp {Qq}, {Qq}, {Qq} {m} row_mask:0xf bank_mask:0xf")
        for w in ["16", "32"]:
            a(f"""
            v_mov_b32 v{b}, {S}
            v_mov_b32 v{b+1}, {Qq}
            v_permlane{w}_swap_b32 {S}, v{b}
            v_permlane{w}_swap_b32 {Qq}, v{b+1}
            v_add_f32 {S}, {S}, v{b}
            v_add_f32 {Qq}, {Qq}, v{b+1}
            """)
        a(f"""
        v_mul_f32 {S}, {f2u(1/640)}, {S}
        v_mul_f32 {t}, {S}, {S}
        v_mul_f32 {Qq}, {f2u(1/640)}, {Qq}
        v_sub_f32 {Qq}, {Qq}, {t}
        v_max_f32 {Qq}, 0, {Qq}
        v_sub_f32 {S}, 0, {S}
        v_cvt_pk_bf16_f32 v{b+2}, {S}, {S}
        v_cvt_pk_bf16_f32 {t}, {Qq}, {Qq}
        v_and_b32 {t}, 0xffff0000, {t}
        v_add_f32 {t}, {f2u(1e-5)}, {t}
        v_cvt_pk_bf16_f32 {t}, {t}, {t}
        v_and_b32 {t}, 0xffff0000, {t}
        v_sqrt_f32 {t}, {t}
        v_cvt_pk_bf16_f32 {t}, {t}, {t}
        v_and_b32 v{b+3}, 0xffff0000, {t}
        s_lshl_b32 s3, {WAVE}, 3
        s_add_u32 s3, s3, {L_ST}
        v_mov_b32 {t}, s3
        ds_write_b64 {t}, {P(b+2)}
        buffer_load_dword v253, {VZ}, {sDBG}, 0 offen sc1
        """)
    def stats_out(tag):
        a(f"""
        s_cmp_lg_u32 {WAVE}, 0
        s_cbranch_scc1 {tag}
        v_and_b32 v160, 7, {LANE}
        v_lshlrev_b32 v160, 3, v160
        v_add_u32 v160, {L_ST}, v160
        ds_read_b64 v[162:163], v160
        v_lshlrev_b32 v161, 3, {LANE}
        s_lshl_b32 s3, {U1}, 4
        s_add_u32 s3, s3, {OFF_ST}
        s_mov_b64 exec, 0xffff
        s_waitcnt lgkmcnt(0)
        buffer_store_dwordx2 v[162:163], v161, {sWS}, s3 offen sc1
        s_mov_b64 exec, -1
{tag}:
        """)
    def get_token(tag):
        a(f"""
{tag}:
        v_readfirstlane_b32 {TOK}, v253
        s_cmp_lg_u32 {TOK}, 0
        s_cbranch_scc1 {tag}_X
        s_add_u32 {SPIN}, {SPIN}, 1
        s_cmp_gt_u32 {SPIN}, {SPINMAX}
        s_cbranch_scc1 {tag}_X
        s_sleep 8
        buffer_load_dword v253, {VZ}, {sDBG}, 0 offen sc1
        s_waitcnt vmcnt(0)
        s_branch {tag}
{tag}_X:
        """)
    def flag_store(soff, vt='v246', vd='v247'):
        a(f"""
        v_lshlrev_b32 {vt}, 2, {LANE}
        v_mov_b32 {vd}, {TOK}
        s_mov_b32 exec_hi, 0
        buffer_store_dword {vd}, {vt}, {sWS}, {soff} offen sc1
        s_mov_b32 exec_hi, -1
        """)
    def aux_signal(tag):
        get_token(tag + "T")
        a(f"""
        s_cmp_lg_u32 {WAVE}, 0
        s_cbranch_scc1 {tag}
        s_lshl_b32 s4, s2, 7
        s_add_u32 s4, s4, {OFF_FL + 512*128}
        """)
        flag_store('s4', 'v160', 'v161')
        a.label(tag)
    def kww_init():
        a(f"""
        s_mul_i32 s3, {WAVE}, 14
        s_cmp_eq_u32 {WAVE}, 3
        s_cselect_b32 s3, 41, s3
        s_mul_i32 s4, {WAVE}, 5
        s_add_u32 s4, s4, 34
        s_cmp_ge_u32 {WAVE}, 4
        s_cselect_b32 {FLG}, s4, s3
        s_mul_i32 {KWW}, {CT}, {W2_CT}
        s_mul_i32 s4, {FLG}, 5120
        s_add_u32 {KWW}, {KWW}, s4
        s_add_u32 {KWW}, {KWW}, {OFF_W2}
        """)
    def wloads(R, srdn=sWS):
        L = [f"buffer_load_dwordx4 {Q4(R+4*mt)}, {V16}, {srdn}, {KWW} offen offset:{1024*mt} sc1" for mt in range(4)]
        L.append(f"buffer_load_dwordx4 {Q4(R+16)}, {V16B}, {srdn}, {KWW} offen sc1\ns_add_u32 {KWW}, {KWW}, 5120")
        return L

    RLB = 131072
    def rl_setup():
        a(f"""
        s_lshr_b32 s3, s2, 3
        s_and_b32 s4, s2, 7
        s_mul_i32 s4, s4, 24
        s_add_u32 s3, s3, s4
        s_lshl_b32 s3, s3, 2
        s_add_u32 s3, s3, {WAVE}
        s_sub_u32 s3, s3, 4                   ; job id 0..767
        s_mul_i32 s6, s3, 6554
        s_lshr_b32 s6, s6, 16                 ; ks
        s_mul_i32 s4, s6, 10
        s_sub_u32 s7, s3, s4                  ; line
        v_lshrrev_b32 v183, 3, {LANE}
        v_and_b32 v184, 7, {LANE}
        v_lshlrev_b32 v184, 4, v184
        v_mad_u32_u24 v184, v183, v185, v184
        s_lshl_b32 s3, s7, 7
        v_add_u32 v184, s3, v184              ; row8*1280 + line*128 + pos*16
        """.replace("v_mad_u32_u24 v184, v183, v185, v184", "v_mul_u32_u24 v185, 1280, v183\n        v_add_u32 v184, v185, v184"))
        for m in range(4):
            a(f"""
            s_lshl_b32 s3, s7, 2
            s_add_u32 s3, s3, {m}
            s_mul_i32 s4, s3, 52
            s_lshr_b32 s4, s4, 8
            s_mul_i32 s5, s4, 5
            s_sub_u32 s5, s3, s5
            s_mul_i32 s4, s4, {W2_CT}
            s_lshl_b32 s5, s5, 10
            s_add_u32 s4, s4, s5
            s_mul_i32 s5, s6, 5120
            s_add_u32 s4, s4, s5
            s_add_u32 s4, s4, {OFF_W2}
            s_cmp_ge_u32 s6, 74
            s_cselect_b32 s4, {OOB}, s4
            v_add_u32 v{178+m}, s4, {V16}
            """)
        a(f"""
        s_lshl_b32 s7, {WAVE}, 12
        s_add_u32 s7, s7, {RLB - 4*4096}
        v_lshrrev_b32 v185, 4, {LANE}
        v_bfe_u32 v186, {LANE}, 2, 2
        v_lshl_add_u32 v185, v185, 3, v186
        v_and_b32 v186, 3, {LANE}
        v_lshlrev_b32 v186, 3, v186
        v_lshl_add_u32 v185, v185, 7, v186
        v_add_u32 v182, s7, v185
        ; source rows
        s_cmp_ge_u32 s6, 54
        s_cselect_b32 s36, {lo(pWO)}, {lo(pD)}
        s_cselect_b32 s37, {hi(pWO)}, {hi(pD)}
        s_cselect_b32 s3, 640, 1728
        s_mul_i32 s38, s3, 1280
        s_cbranch_scc1 RL_WO_@
        s_mul_i32 s3, s6, {32*1280}
        v_add_u32 v184, s3, v184
        v_add_u32 v185, {8*1280}, v184
        v_add_u32 v186, {16*1280}, v184
        v_add_u32 v187, {24*1280}, v184
        s_branch RL_GO_@
RL_WO_@:
        s_sub_u32 s3, s6, 54
        s_mul_i32 s4, s3, 52
        s_lshr_b32 s4, s4, 8
        s_mul_i32 s5, s4, 5
        s_sub_u32 s5, s3, s5
        s_mul_i32 s4, s4, 160
        s_mul_i32 s3, s5, 40
        s_cmp_eq_u32 s5, 4
        s_cselect_b32 s3, 16, s3
        s_add_u32 s4, s4, s3
        s_mul_i32 s4, s4, 1280
        v_add_u32 v184, s4, v184
        s_cmp_eq_u32 s5, 4
        s_cselect_b32 s3, 16, 0
        s_cselect_b32 s4, 40, 8
        s_cselect_b32 s5, 40, 12
        s_mul_i32 s3, s3, 1280
        s_mul_i32 s4, s4, 1280
        s_mul_i32 s5, s5, 1280
        v_lshrrev_b32 v183, 2, v183
        v_mul_lo_u32 v183, v183, s3
        v_add_u32 v184, v183, v184
        v_add_u32 v185, s4, v184
        v_add_u32 v186, s5, v185
        v_add_u32 v187, s4, v186
RL_GO_@:
        """.replace("s_cselect_b32 s3, 640, 1728", "s_movk_i32 s3, 1728\n        s_cselect_b32 s3, 640, s3").replace("@", str(rl_setup.n)))
        rl_setup.n += 1
    rl_setup.n = 0
    def rl_dma():
        a(f"s_lshl_b32 s7, {WAVE}, 12\ns_add_u32 s7, s7, {RLB - 4*4096}")
        for g in range(4):
            a(f"s_add_u32 m0, s7, {g*1024}\nbuffer_load_dwordx4 v{184+g}, {sH}, 0 offen lds")
    def rl_out():
        for m in range(4):
            for i in range(2):
                a(f"ds_read_b64_tr_b16 {P(188+4*m+2*i)}, v182 offset:{i*512 + m*32}")
        for m in range(4):
            a(f"s_waitcnt lgkmcnt({6-2*m})\nbuffer_store_dwordx4 {Q4(188+4*m)}, v{178+m}, {sWS}, 0 offen sc1")
    def rl_guard(tag):
        if opt.get("norl"): a(f"s_branch {tag}")
        a(f"s_cmp_lt_u32 {WAVE}, 4\ns_cbranch_scc1 {tag}\ns_cmp_eq_u32 {ROLE}, 1\ns_cbranch_scc1 {tag}")
    a(f"""
    s_cmp_lg_u32 {ROLE}, 0
    s_cbranch_scc1 KF_QKVLOOP
    """)

    DPOS = opt.get("dpos", {6: {3:[3,7,10], 5:[2,4,6,8,10]}, 5: {3:[3,6,8], 5:[1,3,5,7,8]}})
    def mainloop(tag, ntt, nct, RW, RX, FA, FB, pre, post0, late, tailw, duty):
        nm = ntt*nct
        per = opt.get("per", 3)
        def reads(jj, s, F):
            L = []
            xs = (jj >> 1) & 1; ks = (jj & 1)*2 + s
            for t in range(ntt):
                L.append(f"ds_read_b128 {Q4(F+4*t)}, {RX[ks]} offset:{xs*16384 + t*4096}")
            for c in range(nct):
                b = F + 4*ntt + 4*c
                for i in range(2):
                    L.append(f"ds_read_b64_tr_b16 {P(b+2*i)}, {RW[jj>>1][c]} offset:{(jj&1)*WSLOT + (16*s+4*i)*128}")
            return L
        def mfmas(F):
            L = []
            for c in range(nct):
                for t in range(ntt):
                    d = 16*(t*nct + c); b = F + 4*ntt + 4*c
                    L.append(f"v_mfma_f32_32x32x16_bf16 v[{d}:{d+15}], {Q4(b)}, {Q4(F+4*t)}, v[{d}:{d+15}]")
            return L
        def phase(M, R, g0, D, pos, X=None, xevery=2):
            R = list(R); n = 0
            for i, m in enumerate(M):
                d = None
                if (g0 + i) in pos:
                    d = D[pos.index(g0 + i)].split("\n"); a(d[0])
                a(m)
                if d: a(d[1])
                for _ in range(per):
                    if R: a(R.pop(0))
                if X and i % xevery == xevery - 1: a(X.pop(0)); n += 1
            for r in R: a(r)
            return n
        pre()
        sync_zero()
        kww_init()
        rl_setup()
        for r in range(16*nm): a(f"v_mov_b32 v{r}, 0")
        for t in dma_w(1): a(t)
        adv_w()
        stats_load()
        a(f"s_mov_b32 {IT}, 4")
        T('pre0')
        a(f"s_waitcnt vmcnt(5)\ns_barrier")
        T('bar0')
        for t in reads(0, 0, FA): a(t)
        for t in dma_w(2): a(t)
        adv_w()
        post0()
        rl_guard(f"{tag}_RL1"); rl_dma(); a.label(f"{tag}_RL1")
        for i, t in enumerate(dma_x(1) + dma_w(3)):
            if DPOS[nm][5][i] < nm: a(t)
        a(f"s_branch {tag}_ENTRY")
        a.label(f"{tag}_LOOP")
        for jj in range(4):
            a(f"s_waitcnt vmcnt({6 if jj%2==0 else 8}) lgkmcnt(0)\ns_barrier")
            D = (dma_x(((jj >> 1) + 1) & 1) if jj % 2 == 0 else []) + dma_w((jj + 3) & 3)
            pos = DPOS[nm][len(D)]
            phase(mfmas(FB), reads(jj, 0, FA), 0, D, pos)
            if jj == 0: a.label(f"{tag}_ENTRY")
            a("s_waitcnt lgkmcnt(0)")
            phase(mfmas(FA), reads(jj, 1, FB), nm, D, pos)
            if jj % 2 == 0: adv_x()
            adv_w()
            if duty:
                a(f"s_sub_u32 {DC}, {DC}, 1\ns_cmp_lt_u32 {DC}, 2\ns_cbranch_scc1 {tag}_HD{jj}\n{tag}_HDR{jj}:")
            if jj == 2: a(f"s_cmp_eq_u32 {IT}, 4\ns_cbranch_scc1 {tag}_HS\n{tag}_HSR:")
            if jj == 3: a(f"s_cmp_ge_u32 {IT}, 3\ns_cbranch_scc1 {tag}_HG\n{tag}_HGR:")
        if stamp and any(n.startswith('it') for n in T.names):
            for k in range(1, 5):
                a(f"s_cmp_lg_u32 {IT}, {5-k}\ns_cbranch_scc1 {tag}_IS{k}")
                T(f'it{k}')
                a.label(f"{tag}_IS{k}")
        a(f"""
        s_sub_u32 {IT}, {IT}, 1
        s_cmp_lg_u32 {IT}, 0
        s_cbranch_scc1 {tag}_LOOP
        """)
        a(f"s_waitcnt vmcnt(6) lgkmcnt(0)\ns_barrier")
        a(f"s_mov_b32 {U1}, {FL_AUX}\nbuffer_load_dword v253, {VZ}, {sWS}, {U1} offen sc1")
        D = dma_x(1) + dma_w(3); pos = DPOS[nm][5]
        phase(mfmas(FB), reads(0, 0, FA), 0, D, pos)
        a("s_waitcnt lgkmcnt(0)")
        phase(mfmas(FA), reads(0, 1, FB), nm, D, pos)
        a(f"s_waitcnt vmcnt(9) lgkmcnt(0)\ns_barrier")
        phase(mfmas(FB), reads(1, 0, FA), 0, [], [])
        a(f"""
        s_waitcnt vmcnt(5)
        v_readfirstlane_b32 s3, v253
        s_cmp_lg_u32 s3, {TOK}
        s_cbranch_scc1 {tag}_HB
{tag}_HBR:
        s_waitcnt lgkmcnt(0)
        """)
        T('aux')
        X = list(late) + list(tailw); n = 0
        n += phase(mfmas(FA), reads(1, 1, FB), nm, [], [], X, 1)
        a(f"s_waitcnt vmcnt({3+n}) lgkmcnt(0)\ns_barrier")
        n += phase(mfmas(FB), reads(2, 0, FA), 0, [], [], X, opt.get("xev", 1))
        a("s_waitcnt lgkmcnt(0)")
        n += phase(mfmas(FA), reads(2, 1, FB), nm, [], [], X, opt.get("xev", 1))
        a(f"s_waitcnt vmcnt({n}) lgkmcnt(0)\ns_barrier")
        n += phase(mfmas(FB), reads(3, 0, FA), 0, [], [], X, opt.get("xev", 1))
        a("s_waitcnt lgkmcnt(0)")
        n += phase(mfmas(FA), reads(3, 1, FB), nm, [], [], X, opt.get("xev", 1))
        a("s_waitcnt lgkmcnt(0)")
        n += phase(mfmas(FB), [], 0, [], [], X, opt.get("xev", 1))
        for x in X: a(x); n += 1
        a(f"s_waitcnt vmcnt({n - len(late)})")
        a(f"s_branch {tag}_DONE")
        a.label(f"{tag}_HS")
        rl_guard(f"{tag}_RL2"); rl_out(); a.label(f"{tag}_RL2")
        stats_calc()
        a(f"s_branch {tag}_HSR")
        a.label(f"{tag}_HG")
        a(f"s_cmp_eq_u32 {IT}, 3\ns_cbranch_scc1 {tag}_HG1")
        stats_out(f"{tag}_HG0")
        a(f"s_branch {tag}_HGR")
        a.label(f"{tag}_HG1")
        aux_signal(f"{tag}_HG2")
        a(f"s_branch {tag}_HGR")
        a(f"""
{tag}_HB:
        s_add_u32 {SPIN}, {SPIN}, 1
        s_cmp_gt_u32 {SPIN}, {SPINMAX}
        s_cbranch_scc1 {tag}_HBR
        s_sleep 4
        buffer_load_dword v253, {VZ}, {sWS}, {U1} offen sc1
        s_waitcnt vmcnt(0)
        v_readfirstlane_b32 s3, v253
        s_cmp_lg_u32 s3, {TOK}
        s_cbranch_scc1 {tag}_HB
        s_branch {tag}_HBR
        """)
        if duty:
            for jj in range(4):
                a.label(f"{tag}_HD{jj}")
                duty(jj & 1)
                a(f"s_branch {tag}_HDR{jj}")
        a.label(f"{tag}_DONE")

    def xread_addrs(RX, tokbase_s):
        a(f"""
        v_and_b32 v1, 31, {LANE}
        v_lshrrev_b32 v2, 5, {LANE}
        v_bfe_u32 v3, {LANE}, 1, 3
        v_xor_b32 v3, v2, v3
        v_lshlrev_b32 v3, 4, v3
        v_add_u32 v1, {tokbase_s}, v1
        v_lshl_add_u32 v3, v1, 7, v3
        v_add_u32 {RX[0]}, {XBASE}, v3
        """)
        for s in range(1, 4): a(f"v_xor_b32 {RX[s]}, {32*s}, {RX[0]}")
    def wread_addrs(RW, nct, tile0_s):
        a(f"""
        v_bfe_u32 v1, {LANE}, 2, 2            ; r
        v_lshrrev_b32 v2, 5, {LANE}           ; hh
        v_lshl_add_u32 v2, v2, 3, v1
        v_lshl_add_u32 v11, v2, 7, v11
        v_mul_u32_u24 v2, 12288, v10
        v_add_u32 v11, v2, v11
        v_lshrrev_b32 v1, 1, v1
        v_lshlrev_b32 v2, 1, v10
        v_xor_b32 v1, v1, v2
        """)
        for c in range(nct):
            a(f"""
            s_add_u32 s3, {tile0_s}, {c}
            s_and_b32 s4, s3, 3
            s_lshr_b32 s3, s3, 2
            s_lshl_b32 s3, s3, 12
            v_xor_b32 v2, s4, v1
            v_lshl_add_u32 v2, v2, 5, v11
            v_add_u32 {RW[0][c]}, s3, v2
            v_add_u32 {RW[1][c]}, {2*WSLOT}, {RW[0][c]}
            """)
    class Sprinkle:
        def __init__(s, items, per): s.items = list(items); s.per = per; s.n = 0
        def __call__(s, text):
            for l in text.split("\n"):
                if not l.strip(): continue
                a(l); s.n += 1
                if s.items and s.n % s.per == 0: a(s.items.pop(0))
        def flush(s):
            for i in s.items: a(i)
            s.items = []

    RWc = [['v230','v231','v232'], ['v233','v234','v235']]; RXc = ['v236','v237','v238','v239']
    def c_pre():
        a(f"""
        s_lshr_b32 {T0}, {WAVE}, 2
        s_and_b32 {T1}, {WAVE}, 3
        s_lshl_b32 {T2}, {T0}, 6
        s_mul_i32 {T3}, {T1}, 3
        s_bfe_u32 {DC}, {PAR}, 0x80008
        s_cmp_eq_u32 {T0}, 0
        s_cselect_b32 {DC}, {DC}, 0
        v_bfe_u32 v10, {LANE}, 4, 1
        v_and_b32 v11, 1, {LANE}
        v_lshlrev_b32 v11, 4, v11
        v_bfe_u32 v12, {LANE}, 1, 1
        v_lshl_add_u32 v11, v12, 3, v11
        """)
        wread_addrs(RWc, 3, T3); xread_addrs(RXc, T2)
        a(f"""
        v_and_b32 v1, 31, {LANE}
        v_and_b32 v2, 7, {LANE}
        v_lshlrev_b32 v2, 3, v2
        v_lshrrev_b32 v3, 3, v1
        v_lshl_add_u32 v2, v3, 7, v2
        s_lshl_b32 s3, {RB}, 7
        s_add_u32 s3, s3, {T2}
        s_lshl_b32 s3, s3, 4
        s_add_u32 s3, s3, {OFF_ST}
        v_add_u32 v96, s3, v2
        s_mul_i32 s3, {COL}, 12
        s_add_u32 s3, s3, {T3}
        s_mul_i32 s3, s3, 1280
        s_add_u32 s3, s3, {OFF_CSP}
        v_lshlrev_b32 v1, 2, v1
        v_add_u32 v1, s3, v1
        v_lshrrev_b32 v2, 5, {LANE}
        v_lshl_add_u32 v97, v2, 7, v1         ; + hh*128
        v_lshl_add_u32 v99, v2, 9, v1         ; + hh*512
        v_and_b32 v98, 15, {LANE}
        v_lshlrev_b32 v98, 4, v98
        v_lshl_add_u32 v98, v2, 8, v98
        v_bfe_u32 v2, {LANE}, 4, 1
        v_lshl_add_u32 v98, v2, 10, v98
        v_mov_b32 v172, 0
        v_mov_b32 v173, 0
        v_mov_b32 v174, 0
        """)
    c_late = [f"buffer_load_dwordx2 v[140:141], v96, {sWS}, 0 offen sc1", f"buffer_load_dwordx2 v[142:143], v96, {sWS}, 0 offen offset:512 sc1"]
    for c in range(3):
        c_late += [f"buffer_load_dword v{206+6*c+i}, v99, {sWS}, 0 offen offset:{1280*c+128*i} sc1" for i in range(4)]
        c_late += [f"buffer_load_dword v{210+6*c}, v97, {sWS}, 0 offen offset:{1280*c+1024} sc1"]
    def c_duty(odd):
        a("s_mov_b32 s6, 0x3f803f80")
        for F in (100, 120):
            if F == 120: a("s_waitcnt lgkmcnt(0)")
            for q in range(4):
                for c in range(3): a(f"v_dot2c_f32_bf16 v{172+c}, s6, v{F+8+4*c+q}")
        if odd:
            for c in range(3): a(f"v_mov_b32 v{175+c}, v{172+c}")
            for c in range(3): a(f"v_permlane32_swap_b32 v{172+c}, v{175+c}")
            for c in range(3): a(f"v_add_f32 v{172+c}, v{172+c}, v{175+c}")
            for c in range(3): a(f"v_cvt_pk_bf16_f32 v{175+c}, v{172+c}, v{172+c}")
            for c in range(3): a(f"v_and_b32 v{175+c}, 0xffff0000, v{175+c}")
            for c in range(3): a(f"v_sub_f32 v{172+c}, v{172+c}, v{175+c}")
            for c in range(3): a(f"v_cvt_pk_bf16_f32 v{172+c}, v{175+c}, v{172+c}")
            a(f"s_lshr_b32 s3, {PAR}, 24\ns_lshl_b32 s3, s3, 7\ns_mov_b32 exec_hi, 0")
            for c in range(3): a(f"buffer_store_dword v{172+c}, v97, {sWS}, s3 offen offset:{1280*c} sc1")
            a("s_mov_b32 exec_hi, -1")
    mainloop("KFC", 2, 3, RWc, RXc, 100, 120, c_pre, lambda: None, c_late, wloads(WR[0]) + wloads(WR[1]) + wloads(WR[2]), c_duty)
    T('loopend')
    for t in range(2):
        for q in range(4): a(f"v_mov_b32 v{100+4*t+q}, v{140+2*t}")
    for c in range(3): a(f"v_mov_b32 v{211+6*c}, 0")
    for c in range(3):
        for t in range(2):
            d = 16*(t*3 + c)
            a(f"v_mfma_f32_32x32x16_bf16 v[{d}:{d+15}], {Q4(206+6*c)}, {Q4(100+4*t)}, v[{d}:{d+15}]")
            a(f"v_mfma_f32_32x32x8_bf16 v[{d}:{d+15}], {P(210+6*c)}, {P(100+4*t)}, v[{d}:{d+15}]")
    for t in range(2):
        sd = 141 + 2*t; k = 108 + 6*t
        a(f"""
        v_rcp_f32 v99, v{sd}
        v_mul_f32 v{k+4}, v{sd}, v{sd}
        v_mul_f32 v{k+2}, {f2u(C0)}, v99
        v_mul_f32 v99, v99, v99
        v_mul_f32 v99, {f2u(0.044715)}, v99
        v_mul_f32 v{k}, v99, v{k+2}
        """)
    HS = [KW, KX, DC]
    a(f"""
    s_lshl_b32 s3, {RB}, 1
    s_add_u32 s3, s3, {T0}
    s_mul_i32 s5, s3, {HO_RB}
    s_mul_i32 s6, {COL}, 12
    s_add_u32 s6, s6, {T3}
    """)
    for c in range(3):
        a(f"""
        s_add_u32 s3, s6, {c}
        s_lshr_b32 s4, s3, 1
        s_lshl_b32 s4, s4, 12
        s_and_b32 s3, s3, 1
        s_lshl_b32 s3, s3, 9
        s_add_u32 s4, s4, s3
        s_add_u32 {HS[c]}, s4, s5
        """)
    sp = Sprinkle(wloads(WR[3]), opt.get("cper", 12))
    nst = 0
    for c in range(3):
        for t in range(2):
            d = 16*(t*3 + c); k = 108 + 6*t
            tb = 120 + (nst & 1)*12
            for p in range(4): sp(f"v_pk_mul_f32 {P(tb+2*p)}, {P(d+2*p)}, {P(d+2*p)}")
            for p in range(4): sp(f"v_pk_fma_f32 {P(tb+2*p)}, {P(tb+2*p)}, {P(k)}, {P(k+2)} op_sel_hi:[1,0,0]")
            for p in range(4): sp(f"v_pk_mul_f32 {P(tb+2*p)}, {P(tb+2*p)}, {P(d+2*p)}")
            for p in range(8): sp(f"v_exp_f32 v{tb+p}, v{tb+p}")
            for p in range(4): sp(f"v_pk_mul_f32 {P(d+2*p)}, {P(d+2*p)}, {P(d+8+2*p)}")
            for p in range(4): sp(f"v_pk_fma_f32 {P(tb+2*p)}, {P(tb+2*p)}, {P(k+4)}, {P(k+4)} op_sel_hi:[1,0,0]")
            for p in range(8): sp(f"v_rcp_f32 v{tb+p}, v{tb+p}")
            for p in range(4): sp(f"v_pk_mul_f32 {P(d+2*p)}, {P(d+2*p)}, {P(tb+2*p)}")
            for p in range(4): sp(f"v_cvt_pk_bf16_f32 v{tb+8+p}, v{d+2*p}, v{d+2*p+1}")
            a(f"buffer_store_dwordx4 {Q4(tb+8)}, v98, {sWS}, {HS[c]} offen offset:{t*2048} sc1")
            nst += 1
    sp.flush()
    a("s_branch KF_PUB")

    a.label("KF_QKVLOOP")
    RWq = [['v226','v227','v228','v229','v230'], ['v231','v232','v233','v234','v235']]; RXq = ['v236','v237','v238','v239']
    ZOFF = PHIB + 12800
    def q_post0():
        srd(a, sA, pPHI, 25600)
        a(f"""
        s_mul_i32 s3, {ROLE}, 6400
        s_mul_i32 s4, {COL}, s3
        s_lshl_b32 s5, {WAVE}, 11
        v_add_u32 v86, s5, {V16}
        v_add_u32 v87, 1024, v86
        v_cmp_gt_u32 vcc, s3, v86
        v_cndmask_b32 v86, v255, v86, vcc
        v_cmp_gt_u32 vcc, s3, v87
        v_cndmask_b32 v87, v255, v87, vcc
        s_add_u32 m0, s5, {PHIB}
        buffer_load_dwordx4 v86, {sA}, s4 offen lds
        s_add_u32 m0, s5, {PHIB+1024}
        buffer_load_dwordx4 v87, {sA}, s4 offen lds
        """)
    def q_pre():
        a(f"""
        s_and_b32 {T0}, {WAVE}, 3
        s_lshr_b32 {T1}, {WAVE}, 2
        s_lshl_b32 {T2}, {T0}, 5
        s_mul_i32 {T3}, {T1}, 5
        v_and_b32 v10, 1, {LANE}
        v_bfe_u32 v11, {LANE}, 1, 1
        v_bfe_u32 v12, {LANE}, 4, 1
        v_lshl_add_u32 v11, v12, 1, v11
        v_lshlrev_b32 v11, 3, v11
        """)
        wread_addrs(RWq, 5, T3); xread_addrs(RXq, T2)
        a(f"""
        v_and_b32 v1, 31, {LANE}
        v_and_b32 v2, 7, {LANE}
        v_lshlrev_b32 v2, 3, v2
        v_lshrrev_b32 v3, 3, v1
        v_lshl_add_u32 v2, v3, 7, v2
        s_lshl_b32 s3, {RB}, 7
        s_add_u32 s3, s3, {T2}
        s_lshl_b32 s3, s3, 4
        s_add_u32 s3, s3, {OFF_ST}
        v_add_u32 v80, s3, v2
        v_and_b32 v2, 3, v1
        v_bfe_u32 v3, v1, 2, 1
        v_mad_u32_u24 v2, v3, {PREG}, v2
        s_add_u32 s3, {PBASE}, {OFF_CS//8}
        v_add_u32 v2, s3, v2
        v_lshrrev_b32 v3, 3, v1
        s_lshl_b32 s3, {T3}, 2
        v_add_u32 v3, s3, v3
        """)
        for c in range(5):
            a(f"""
            v_add_u32 v4, {4*c}, v3
            v_mul_u32_u24 v5, 26, v4
            v_lshrrev_b32 v5, 8, v5
            v_mul_u32_u24 v6, 10, v5
            v_sub_u32 v4, v4, v6
            v_lshl_add_u32 v4, v4, 2, v2
            v_and_b32 v6, 1, v5
            v_mad_u32_u24 v4, v6, {PA}, v4
            v_lshrrev_b32 v6, 1, v5
            v_mad_u32_u24 v4, v6, {PB}, v4
            v_lshlrev_b32 v{81+c}, 3, v4
            """)
        a(f"""
        v_bfe_u32 v1, {LANE}, 2, 2            ; r
        v_mul_u32_u24 v1, 40, v1
        v_bfe_u32 v2, {LANE}, 1, 1
        v_bfe_u32 v3, {LANE}, 4, 1
        v_lshl_add_u32 v2, v3, 1, v2          ; idx
        v_and_b32 v3, 1, {LANE}               ; H
        v_lshrrev_b32 v4, 5, {LANE}           ; hh
        s_mul_i32 s3, {ROLE}, 1600
        s_mul_i32 s4, s3, {T1}
        s_add_u32 s4, s4, {PHIB}
        s_lshl_b32 s3, s3, 1
        v_mad_u32_u24 v1, v3, s3, v1
        v_add_u32 v1, s4, v1
        v_lshl_add_u32 v5, v2, 3, v1
        v_mov_b32 v6, {ZOFF}
        v_cmp_eq_u32 vcc, v3, v4
        v_cndmask_b32 v248, v6, v5, vcc
        v_add_u32 v5, 32, v1
        v_cndmask_b32 v5, v6, v5, vcc
        v_cmp_eq_u32 vcc, 0, v2
        v_cndmask_b32 v249, v6, v5, vcc
        """)
    q_late = [f"buffer_load_dwordx2 v[86:87], v80, {sWS}, 0 offen sc1"] + [f"buffer_load_dwordx2 {P(88+2*c)}, v{81+c}, {sWS}, 0 offen sc1" for c in range(5)]
    mainloop("KFQ", 1, 5, RWq, RXq, 98, 122, q_pre, q_post0, q_late, wloads(WR[0]) + wloads(WR[1]) + wloads(WR[2]), None)
    T('loopend')
    def phi_frags(F, pair):
        for Tt in range(2):
            for q in range(5):
                a(f"ds_read_b64_tr_b16 {P(F+10*Tt+2*q)}, v{248+Tt} offset:{pair*800 + 4*q*40}")
    def phi_mfma(D, F, B):
        for Tt in range(2):
            d = D + 16*Tt; f = F + 10*Tt
            a(f"v_mfma_f32_32x32x16_bf16 v[{d}:{d+15}], {Q4(f)}, {Q4(B)}, 0")
            a(f"v_mfma_f32_32x32x16_bf16 v[{d}:{d+15}], {Q4(f+4)}, {Q4(B+4)}, v[{d}:{d+15}]")
            a(f"v_mfma_f32_32x32x8_bf16 v[{d}:{d+15}], {P(f+8)}, {P(B+8)}, v[{d}:{d+15}]")
    a(f"v_cmp_gt_u32 vcc, 32, {LANE}\nv_cndmask_b32 v98, 0, v86, vcc\nv_and_b32 v99, 0xffff, v98")
    phi_frags(226, 1)
    for c in range(5):
        a(f"v_mfma_f32_32x32x8_bf16 v[{16*c}:{16*c+15}], {P(88+2*c)}, v[98:99], v[{16*c}:{16*c+15}]")
    phi_frags(124, 0)
    a(f"""
    v_rcp_f32 v246, v87
    s_cmp_eq_u32 {ROLE}, 2
    s_cbranch_scc1 KF_QEPI
    """)
    for p in range(20): a(f"v_cvt_pk_bf16_f32 v{80+p}, v{2*p}, v{2*p+1}")
    a("s_waitcnt lgkmcnt(0)")
    phi_mfma(0, 124, 80)
    for i in range(2):
        V = 40 + 20*i; O = 100 + 12*i
        for p in range(20): a(f"v_mul_f32 v{V+p}, v246, v{V+p}")
        for p in range(10): a(f"v_cvt_pk_bf16_f32 v{O+p}, v{V+2*p}, v{V+2*p+1}")
        a(f"v_mov_b32 v{O+10}, 0x3f80\nv_mov_b32 v{O+11}, 0")
    phi_mfma(32, 226, 90)
    a(f"""
    v_mul_f32 v144, {f2u(LOG2E)}, v246
    v_sub_f32 v145, 0, v144
    v_lshrrev_b32 v64, 5, {LANE}
    v_mul_u32_u24 v64, {4*18432}, v64
    v_and_b32 v65, 31, {LANE}
    v_add_u32 v65, {T2}, v65
    v_mul_u32_u24 v65, 144, v65
    v_add_u32 v64, v64, v65
    s_mul_i32 s3, {T1}, {2*18432}
    v_add_u32 v247, s3, v64
    s_barrier
    """)
    for i in range(2):
        for q in range(3): a(f"ds_write_b128 v247, {Q4(100+12*i+4*q)} offset:{i*18432 + 80 + 16*q}")
    T('kv_sm')
    sp = Sprinkle(wloads(WR[3]), opt.get("kvper", 14))
    for i in range(2):
        L = 32*i; N = 124; O = 80
        sp(f"v_max3_f32 v64, v{L}, v{L+1}, v{L+2}\nv_min3_f32 v65, v{L}, v{L+1}, v{L+2}")
        for p in range(3, 19, 2):
            sp(f"v_max3_f32 v64, v64, v{L+p}, v{L+p+1}\nv_min3_f32 v65, v65, v{L+p}, v{L+p+1}")
        sp(f"v_max_f32 v64, v64, v{L+19}\nv_min_f32 v65, v65, v{L+19}")
        sp(f"v_mul_f32 v64, v145, v64\nv_mul_f32 v70, v144, v65")
        for p in range(10):
            sp(f"v_pk_fma_f32 {P(N+2*p)}, {P(L+2*p)}, {P(144)}, {P(70)} op_sel_hi:[1,0,0] neg_lo:[1,0,0] neg_hi:[1,0,0]")
            sp(f"v_pk_fma_f32 {P(L+2*p)}, {P(L+2*p)}, {P(144)}, {P(64)} op_sel_hi:[1,0,0]")
        for p in range(20): sp(f"v_exp_f32 v{N+p}, v{N+p}\nv_exp_f32 v{L+p}, v{L+p}")
        sp(f"v_pk_add_f32 {P(66)}, {P(L)}, {P(L+2)}\nv_pk_add_f32 {P(68)}, {P(N)}, {P(N+2)}")
        for p in range(2, 10):
            sp(f"v_pk_add_f32 {P(66)}, {P(66)}, {P(L+2*p)}\nv_pk_add_f32 {P(68)}, {P(68)}, {P(N+2*p)}")
        sp("v_add_f32 v66, v66, v67\nv_add_f32 v68, v68, v69\nv_rcp_f32 v66, v66\nv_rcp_f32 v68, v68")
        for p in range(10):
            sp(f"v_pk_mul_f32 {P(L+2*p)}, {P(L+2*p)}, {P(66)} op_sel_hi:[1,0]")
            sp(f"v_pk_mul_f32 {P(N+2*p)}, {P(N+2*p)}, {P(68)} op_sel_hi:[1,0]")
        order = [('P',0),('P',1),('P',2),('P',3),('P',8),('N',0),('N',1),('N',2),('N',3),('N',8),
                 ('P',4),('P',5),('P',6),('P',7),('P',9),('N',4),('N',5),('N',6),('N',7),('N',9)]
        for n, (k, p) in enumerate(order):
            b = (L if k == 'P' else N) + 2*p
            sp(f"v_cvt_pk_bf16_f32 v{O+n}, v{b}, v{b+1}")
            if n % 4 == 3: a(f"ds_write_b128 v247, {Q4(O+n-3)} offset:{i*18432 + 4*(n-3)}")
    sp.flush()
    a(f"""
    v_bfe_u32 v64, {LANE}, 2, 2
    v_lshrrev_b32 v65, 5, {LANE}
    v_lshl_add_u32 v64, v65, 3, v64
    v_mul_u32_u24 v64, 144, v64
    v_and_b32 v66, 3, {LANE}
    v_bfe_u32 v67, {LANE}, 4, 1
    v_lshl_add_u32 v66, v67, 2, v66
    v_lshl_add_u32 v64, v66, 3, v64
    s_mul_i32 s3, {WAVE}, 18432
    v_add_u32 v246, s3, v64
    v_and_b32 v66, 31, {LANE}
    v_mul_u32_u24 v65, 24, v65
    v_add_u32 v65, v65, v66
    v_lshlrev_b32 v65, 4, v65
    v_cmp_gt_u32 vcc, 24, v66
    v_cndmask_b32 v247, v255, v65, vcc
    s_lshl_b32 s3, {COL}, 3
    s_add_u32 s3, s3, {WAVE}
    s_lshl_b32 s3, s3, 4
    s_add_u32 s3, s3, {RB}
    s_mul_i32 s3, s3, 3840
    s_add_u32 s3, s3, {OFF_P}
    s_waitcnt lgkmcnt(0)
    s_barrier
    """)
    T('kv_mm')
    for s in range(8):
        F = 32 + 12*s
        for n, off in enumerate([0, 64, 80]):
            for i in range(2):
                a(f"ds_read_b64_tr_b16 {P(F+4*n+2*i)}, v246 offset:{(16*s+4*i)*144 + off}")
        if s >= 1:
            G = 32 + 12*(s-1)
            a("s_waitcnt lgkmcnt(6)")
            c0 = "0" if s == 1 else "v[0:15]"; c1 = "0" if s == 1 else "v[16:31]"
            a(f"v_mfma_f32_32x32x16_bf16 v[0:15], {Q4(G)}, {Q4(G+8)}, {c0}")
            a(f"v_mfma_f32_32x32x16_bf16 v[16:31], {Q4(G+4)}, {Q4(G+8)}, {c1}")
    G = 32 + 84
    a("s_waitcnt lgkmcnt(0)")
    a(f"v_mfma_f32_32x32x16_bf16 v[0:15], {Q4(G)}, {Q4(G+8)}, v[0:15]")
    a(f"v_mfma_f32_32x32x16_bf16 v[16:31], {Q4(G+4)}, {Q4(G+8)}, v[16:31]")
    for g in range(5):
        a(f"buffer_store_dwordx4 {Q4(4*g)}, v247, {sWS}, s3 offen offset:{g*768} sc1")
    a("s_branch KF_PUB")

    a.label("KF_QEPI")
    for p in range(40): a(f"v_cvt_pk_bf16_f32 v{80+p}, v{2*p}, v{2*p+1}")
    a(f"""
    v_lshrrev_b32 v0, 5, {LANE}
    v_and_b32 v1, 31, {LANE}
    v_lshlrev_b32 v2, 19, v0
    v_lshl_add_u32 v144, v1, 4, v2
    v_lshlrev_b32 v2, 17, v0
    v_lshl_add_u32 v145, v1, 3, v2
    s_lshl_b32 s3, {COL}, 2
    s_add_u32 s3, s3, {T1}
    s_lshl_b32 s3, s3, 8
    s_lshl_b32 s4, {RB}, 2
    s_add_u32 s4, s4, {T0}
    s_add_u32 s3, s3, s4
    s_lshl_b32 s5, s3, 10
    s_add_u32 s5, s5, {OFF_PQA}
    s_lshl_b32 s6, s3, 8
    s_add_u32 s6, s6, {OFF_PQC}
    s_waitcnt lgkmcnt(0)
    """)
    def qout(L, O):
        for p in range(20): a(f"v_mul_f32 v{L+p}, v246, v{L+p}")
        for p in range(10): a(f"v_cvt_pk_bf16_f32 v{O+p}, v{L+2*p}, v{L+2*p+1}")
        a(f"""
        buffer_store_dwordx4 {Q4(O)}, v144, {sWS}, s5 offen sc1
        buffer_store_dwordx4 {Q4(O+4)}, v144, {sWS}, s5 offen offset:512 sc1
        buffer_store_dwordx2 {P(O+8)}, v145, {sWS}, s6 offen sc1
        s_add_u32 s5, s5, 65536
        s_add_u32 s6, s6, 16384
        """)
    phi_mfma(0, 124, 80); phi_mfma(32, 226, 90)
    phi_frags(124, 2); phi_frags(226, 3)
    qout(0, 64)
    a("s_waitcnt lgkmcnt(0)")
    phi_mfma(0, 124, 100)
    qout(32, 80)
    phi_mfma(32, 226, 110)
    qout(0, 64); qout(32, 80)
    for t in wloads(WR[3]): a(t)
    a("s_branch KF_PUB")

    a.label("KF_SPARE")
    a(f"""
    s_or_b32 s3, {RB}, {WAVE}
    s_cmp_lg_u32 s3, 0
    s_cbranch_scc1 KF_NOTOK
    s_memrealtime s[4:5]
    s_waitcnt lgkmcnt(0)
    s_mul_i32 s5, s5, 0x9e3779b1
    s_xor_b32 s4, s4, s5
    s_or_b32 s4, s4, 1
    v_mov_b32 v1, s4
    s_mov_b64 exec, 1
    buffer_store_dword v1, {VZ}, {sDBG}, 0 offen sc1
    s_mov_b64 exec, -1
KF_NOTOK:
    """)
    stats_load()
    sync_zero()
    rl_setup(); rl_guard("KF_SRL"); rl_dma(); a.label("KF_SRL")
    a(f"""
    v_lshrrev_b32 v30, 3, {LANE}
    v_and_b32 v31, 7, {LANE}
    v_lshlrev_b32 v31, 4, v31
    s_lshl_b32 s3, {WAVE}, 3
    v_add_u32 v30, s3, v30
    v_mul_u32_u24 v30, 3840, v30
    s_lshl_b32 s3, {RB}, 8
    v_add3_u32 v36, v30, v31, s3
    s_cmp_eq_u32 {RB}, 15
    s_cselect_b32 s14, 0, s14
    s_mov_b32 {KW}, 0
    """)
    for i in range(10):
        for l in range(2):
            a(f"buffer_load_dwordx4 {Q4(60+8*i+4*l)}, v36, {sW}, {KW} offen offset:{128*l}")
        a(f"s_add_u32 {KW}, {KW}, {64*3840}")
    for r in range(40, 56): a(f"v_mov_b32 v{r}, 0")
    a("s_mov_b32 s6, 0x00003f80\ns_mov_b32 s7, 0x3f800000")
    for i in range(10):
        a(f"s_waitcnt vmcnt({18-2*i})")
        for l in range(2):
            for q in range(4):
                a(f"v_dot2c_f32_bf16 v{40+8*l+2*q}, s6, v{60+8*i+4*l+q}\nv_dot2c_f32_bf16 v{41+8*l+2*q}, s7, v{60+8*i+4*l+q}")
    a(f"""
    v_lshlrev_b32 v30, 5, {LANE}
    s_lshl_b32 s3, {WAVE}, 11
    v_add_u32 v30, s3, v30
    """)
    for l in range(2):
        a(f"ds_write_b128 v30, {Q4(40+8*l)} offset:{l*16384}\nds_write_b128 v30, {Q4(44+8*l)} offset:{l*16384+16}")
    a("s_waitcnt lgkmcnt(0)")
    rl_guard("KF_SRL2"); rl_out(); a.label("KF_SRL2")
    stats_calc()
    T('pre0')
    a("s_waitcnt lgkmcnt(0)\ns_barrier")
    stats_out("KF_SST")
    a(f"""
    s_cmp_ge_u32 {WAVE}, 2
    s_cbranch_scc1 KF_CSDONE
    s_cmp_eq_u32 {RB}, 15
    s_cbranch_scc1 KF_CSDONE
    s_lshl_b32 s3, {WAVE}, 14
    v_lshl_add_u32 v1, {LANE}, 2, s3
    """)
    for e in range(32): a(f"ds_read2st64_b32 {P(10+2*e)}, v1 offset0:{2*e} offset1:{2*e+1}")
    a("s_waitcnt lgkmcnt(0)")
    n = 32
    while n > 1:
        for e in range(n//2): a(f"v_pk_add_f32 {P(10+2*e)}, {P(10+2*e)}, {P(10+2*(e+n//2))}")
        n //= 2
    a(f"""
    v_add_f32 v10, v10, v11
    v_cvt_pk_bf16_f32 v2, v10, v10
    v_and_b32 v3, 0xffff0000, v2
    v_sub_f32 v10, v10, v3
    v_cvt_pk_bf16_f32 v4, v10, v10
    v_and_b32 v3, 0xffff0000, v4
    v_sub_f32 v10, v10, v3
    v_and_b32 v2, 0xffff, v2
    v_or_b32 v4, v2, v3
    v_cvt_pk_bf16_f32 v5, v10, {VZ}
    s_lshl_b32 s3, {RB}, 1
    s_add_u32 s3, s3, {WAVE}
    s_lshl_b32 s3, s3, 9
    s_add_u32 s3, s3, {OFF_CS}
    v_lshlrev_b32 v1, 3, {LANE}
    buffer_store_dwordx2 v[4:5], v1, {sWS}, s3 offen sc1
KF_CSDONE:
    s_waitcnt vmcnt(0)
    s_barrier
    """)
    aux_signal("KF_SSIG")
    T('bar0')
    a(f"""
    s_cmp_lg_u32 {WAVE}, 0
    s_cbranch_scc1 KF_SPOLLED
    s_mov_b32 {U1}, {FL_AUX}
    s_cmp_lg_u32 {RB}, 0
    s_cbranch_scc1 KF_SPOLL
    ; aggregator: wait for all 256 F0 flags, then raise FAUX
    v_lshlrev_b32 v1, 7, {LANE}
    s_mov_b32 s4, {OFF_FL + 512*128}
    s_mov_b32 s5, 4
KF_AGG:
    buffer_load_dword v2, v1, {sWS}, s4 offen sc1
    s_waitcnt vmcnt(0)
    v_cmp_ne_u32 vcc, {TOK}, v2
    s_add_u32 {SPIN}, {SPIN}, 1
    s_cmp_gt_u32 {SPIN}, {SPINMAX}
    s_cbranch_scc1 KF_AGGX
    s_nop 2
    s_cbranch_vccnz KF_AGG
    s_add_u32 s4, s4, 8192
    s_sub_u32 s5, s5, 1
    s_cmp_lg_u32 s5, 0
    s_cbranch_scc1 KF_AGG
KF_AGGX:
    """)
    flag_store(U1)
    a(f"""
KF_SPOLL:
    s_sleep 8
    buffer_load_dword v253, {VZ}, {sWS}, {U1} offen sc1
    s_waitcnt vmcnt(0)
    v_readfirstlane_b32 s3, v253
    s_add_u32 {SPIN}, {SPIN}, 1
    s_cmp_gt_u32 {SPIN}, {SPINMAX}
    s_cbranch_scc1 KF_SPOLLED
    s_cmp_lg_u32 s3, {TOK}
    s_cbranch_scc1 KF_SPOLL
KF_SPOLLED:
    s_barrier
    """)
    T('loopend')
    kww_init()
    for R in WR:
        for t in wloads(R): a(t)

    a.label("KF_PUB")
    KH = KW; LB = MW
    srd(a, sH, 's[16:17]', WS_SIZE)
    a(f"""
    s_mul_i32 {KH}, {RB64}, {HO_RB}
    s_lshl_b32 s4, {FLG}, 12
    s_add_u32 {KH}, {KH}, s4
    s_mul_i32 {LB}, {WAVE}, 20480
    s_bfe_u32 s4, {PAR}, 0x80010
    s_lshl_b32 s4, s4, 4
    s_add_u32 s4, s4, {RB}
    s_lshl_b32 s4, s4, 7
    s_add_u32 s4, s4, {OFF_FL}
    v_mov_b32 v253, 1
    v_add_u32 v249, {LB}, {V16}
    v_lshlrev_b32 v248, 7, {LANE}         ; lane*128
    """)
    T('epiend')
    a(f"""
    s_waitcnt vmcnt(0)
    s_barrier
    s_cmp_lg_u32 {WAVE}, 7
    s_cbranch_scc1 KF_PUB2
    """)
    flag_store('s4')
    a.label("KF_PUB2")
    T('pub')
    def ldsw(off):
        for mt in range(5):
            a(f"s_add_u32 m0, {LB}, {off + (4096 if mt == 4 else 0)}")
            if mt < 4: a(f"buffer_load_dwordx4 {V16}, {sWS}, {KWW} offen offset:{1024*mt} sc1 lds")
            else: a(f"buffer_load_dwordx4 {V16B}, {sWS}, {KWW} offen sc1 lds")
        a(f"s_add_u32 {KWW}, {KWW}, 5120")
    def wait_flags(tag, leader, vaddr, soff, mask, ldsw_, val, sleep):
        a(f"""
        v_mov_b32 v246, {ldsw_}
        s_cmp_lg_u32 {WAVE}, {leader}
        s_cbranch_scc1 {tag}_F
        s_mov_b64 exec, {mask}
{tag}_L:
        buffer_load_dword v247, {vaddr}, {sWS}, {soff} offen sc1
        s_waitcnt vmcnt(0)
        v_cmp_ne_u32 vcc, {TOK}, v247
        s_add_u32 {SPIN}, {SPIN}, 1
        s_cmp_gt_u32 {SPIN}, {SPINMAX}
        s_cbranch_scc1 {tag}_X
        s_nop 2
        s_cbranch_vccz {tag}_X
        s_mov_b64 exec, vcc
        s_sleep {sleep}
        s_branch {tag}_L
{tag}_X:
        s_mov_b64 exec, -1
        v_mov_b32 v247, {val}
        ds_write_b32 v246, v247
        s_branch {tag}_D
{tag}_F:
        """)
        lds_spin(tag + "_S", val)
        a.label(f"{tag}_D")
    def lds_spin(tag, val):
        a(f"""
{tag}:
        ds_read_b32 v247, v246
        s_waitcnt lgkmcnt(0)
        v_readfirstlane_b32 s3, v247
        s_add_u32 {SPIN}, {SPIN}, 1
        s_cmp_gt_u32 {SPIN}, {64*SPINMAX}
        s_cbranch_scc1 {tag}_X
        s_cmp_ge_u32 s3, {val}
        s_cbranch_scc1 {tag}_X
        s_sleep 1
        s_branch {tag}
{tag}_X:
        """)
    def lds_arrive(word, ret=False):
        a(f"v_mov_b32 v246, {word}\ns_mov_b64 exec, 1")
        a(f"ds_add_rtn_u32 v247, v246, v253" if ret else "ds_add_u32 v246, v253")
        a("s_mov_b64 exec, -1")
    def hloads(d):
        for t in range(4): a(f"buffer_load_dwordx4 {Q4(80+16*d+4*t)}, {V16}, {sH}, {KH} offen offset:{1024*t} sc1")
        a(f"s_add_u32 {KH}, {KH}, 4096")
    def step_mfma(R, Hb, first):
        for mt in range(5):
            for t in range(4):
                c = 4*(t*5+mt)
                a(f"v_mfma_f32_16x16x32_bf16 {Q4(c)}, {Q4(R+4*mt)}, {Q4(Hb+4*t)}, {'0' if first else Q4(c)}")
    a(f"s_cmp_ge_u32 {WAVE}, 4\ns_cbranch_scc1 KF_SW")

    LOFF = [0, 5120, 10240, 15360, 4*20480+5120, 4*20480+10240]
    NL = len(LOFF)
    for off in LOFF: ldsw(off)
    srd(a, sW, 's[16:17]', WS_SIZE); srd(a, sA, pOUT, 2621440)
    a(f"""
    v_add_u32 v245, {4*20480}, v249
    v_and_b32 v244, 15, {LANE}
    v_mul_u32_u24 v244, 1280, v244
    v_lshrrev_b32 v243, 4, {LANE}
    v_lshl_add_u32 v244, v243, 3, v244
    s_lshl_b32 s3, {RB64}, 2
    s_add_u32 s3, s3, {WAVE}
    s_mul_i32 s3, s3, {16*1280}
    s_mul_i32 s4, {CT}, 160
    s_add_u32 {T0}, s3, s4
    v_lshlrev_b32 v243, 11, {LANE}
    s_lshr_b32 s3, {RB64}, 1
    s_lshl_b32 s3, s3, 7
    s_add_u32 {T1}, s3, {OFF_FL}
    """)
    for mt in range(5): a(f"buffer_load_dwordx2 {P(226+2*mt)}, v244, {sX}, {T0} offen offset:{32*mt}")
    wait_flags("KF_WH", 0, 'v243', T1, "0x1ff", L_GOH, 1, opt.get("slh", 3))
    T('fh')
    HD = opt.get("hdepth", 4)
    log = []
    for d in range(HD): hloads(d); log += [('H', d)]*4
    def need(tags):
        last = max(i for i, t in enumerate(log) if t in tags)
        return len(log) - 1 - last
    for st in range(14):
        R = WR[st % 4]
        tags = [('H', st)] + ([('W', st)] if st >= 4 + NL else [])
        a(f"s_waitcnt vmcnt({need(tags)})" + (" lgkmcnt(0)" if st == 3 + NL else (f" lgkmcnt({5*min(3, 3+NL-st)})" if 4 <= st < 4 + NL else "")))
        step_mfma(R, 80 + 16*(st % HD), st == 0)
        if st + HD == 13: a(f"s_cmp_ge_u32 {WAVE}, 2\ns_cselect_b32 s38, 0, s38")
        if st + HD < 14: hloads(st % HD); log += [('H', st + HD)]*4
        nx = st + 4
        if nx < 4 + NL:
            off = LOFF[nx - 4]
            for mt in range(5):
                a(f"ds_read_b128 {Q4(R+4*mt)}, {'v249' if off < 65536 else 'v245'} offset:{(off if off < 65536 else off - 4*20480) + 1024*mt}")
        elif nx < 14:
            if nx == 13: a(f"s_cmp_ge_u32 {WAVE}, 2\ns_cselect_b32 s14, 0, s14")
            for t in wloads(R, sW): a(t)
            log += [('W', nx)]*5
    T('gemmend')
    for t in range(20): a(f"ds_write_b128 v249, {Q4(4*t)} offset:{1024*t}")
    a(f"""
    s_mul_i32 s3, {WAVE}, 5120
    v_add_u32 v242, s3, {V16}
    v_add_u32 v243, {2*20480}, v242
    s_waitcnt lgkmcnt(0)
    """)
    lds_arrive(L_D)
    lds_spin("KF_DS", 4)
    def gather(base):
        for mt in range(5):
            for w in range(4):
                a(f"ds_read_b128 {Q4(base+16*mt+4*w)}, {'v242' if w < 2 else 'v243'} offset:{(w%2)*20480 + 1024*mt}")
    def reduce4(base, mt):
        b = base + 16*mt
        a(f"s_waitcnt lgkmcnt({min(15, 4*(4-mt))})")
        for o in (0, 2):
            a(f"v_pk_add_f32 {P(b+o)}, {P(b+o)}, {P(b+4+o)}\nv_pk_add_f32 {P(b+8+o)}, {P(b+8+o)}, {P(b+12+o)}")
        for o in (0, 2): a(f"v_pk_add_f32 {P(b+o)}, {P(b+o)}, {P(b+8+o)}")
    gather(80)
    for mt in range(5):
        reduce4(80, mt)
        b = 80 + 16*mt
        for q in range(4): a(f"v_mul_f32 v{b+4+q}, {f2u(-LOG2E)}, v{b+q}")
        for q in range(4): a(f"v_exp_f32 v{b+4+q}, v{b+4+q}")
        for q in range(4): a(f"v_add_f32 v{b+4+q}, 1.0, v{b+4+q}")
        for q in range(4): a(f"v_rcp_f32 v{b+4+q}, v{b+4+q}")
        X = 226 + 2*mt
        a(f"""
        v_lshlrev_b32 v{20+4*mt}, 16, v{X}
        v_and_b32 v{21+4*mt}, 0xffff0000, v{X}
        v_lshlrev_b32 v{22+4*mt}, 16, v{X+1}
        v_and_b32 v{23+4*mt}, 0xffff0000, v{X+1}
        """)
        for q in range(4): a(f"v_mul_f32 v{4*mt+q}, v{b+q}, v{b+4+q}")
    a(f"""
    v_add_u32 v242, {4*20480}, v242
    v_add_u32 v243, {4*20480}, v243
    """)
    T('dready')
    a("s_barrier\ns_barrier")
    T('f_bar')
    gather(80)
    for mt in range(5):
        reduce4(80, mt)
        b = 80 + 16*mt
        for o in (0, 2): a(f"v_pk_fma_f32 {P(b+o)}, {P(b+o)}, {P(4*mt+o)}, {P(20+4*mt+o)}")
        a(f"""
        v_cvt_pk_bf16_f32 v{b+4}, v{b}, v{b+1}
        v_cvt_pk_bf16_f32 v{b+5}, v{b+2}, v{b+3}
        buffer_store_dwordx2 {P(b+4)}, v244, {sA}, {T0} offen offset:{32*mt}
        """)
    a("s_branch KF_FIN")

    a.label("KF_SW")
    a(f"s_setprio {opt.get('sprio', 2)}")
    ldsw(0)
    a(f"""
    s_cmp_eq_u32 {ROLE}, 1
    s_cbranch_scc1 KF_WAITO
    v_and_b32 v240, 31, {LANE}            ; n
    v_lshrrev_b32 v241, 5, {LANE}         ; hh
    s_sub_u32 {T0}, {WAVE}, 4
    s_mul_i32 {T1}, {OB}, 12
    s_add_u32 {T1}, {T1}, {T0}
    s_lshl_b32 s3, {HEAD}, 6
    s_add_u32 s3, s3, {T1}
    s_lshl_b32 {T2}, s3, 10
    s_add_u32 {T2}, {T2}, {OFF_PQA}
    s_lshl_b32 {T3}, s3, 8
    s_add_u32 {T3}, {T3}, {OFF_PQC}
    v_lshlrev_b32 v1, 3, v240
    v_lshl_add_u32 v244, v241, 2, v1
    s_lshr_b32 s3, {HEAD}, 4
    s_add_u32 s3, s3, 13
    s_lshl_b32 s3, s3, 4
    s_mul_i32 s4, {OB}, 3
    s_add_u32 s3, s3, s4
    s_lshl_b32 s3, s3, 7
    s_add_u32 {U1}, s3, {OFF_FL}
    s_cmp_eq_u32 {OB}, 5
    s_cselect_b32 s6, 1, 7
    s_mov_b32 s7, 0
    s_cselect_b32 {DC}, 0, {WS_SIZE}
    """)
    srd(a, sA, 's[16:17]', DC)
    wait_flags("KF_WQ", 4, 'v248', U1, "s[6:7]", L_GOS, 1, opt.get("slq", 8))
    T('fq')
    for i in range(3):
        sr = sWS if i == 0 else sA
        a(f"buffer_load_dwordx4 {Q4(6*i)}, {V16}, {sr}, {T2} offen sc1\nbuffer_load_dword v{6*i+4}, v244, {sr}, {T3} offen offset:{1024*i} sc1\ns_add_u32 {T2}, {T2}, 4096")
    a(f"""
    s_lshl_b32 s3, {T0}, 6
    v_add_u32 v242, s3, {LANE}            ; item
    v_lshlrev_b32 v226, 4, v242
    v_cmp_gt_u32 vcc, 240, v242
    v_cndmask_b32 v243, v255, v226, vcc
    s_mul_i32 {T2}, {HEAD}, {16*3840}
    s_add_u32 {T2}, {T2}, {OFF_P}
    v_mul_u32_u24 v226, 171, v242
    v_lshrrev_b32 v226, 12, v226          ; quad
    v_mul_u32_u24 v227, 24, v226
    v_sub_u32 v227, v242, v227
    v_mul_u32_u24 v227, 80, v227
    v_cmp_lt_u32 vcc, 4, v226
    v_cndmask_b32 v228, 0, 1, vcc         ; H
    v_mul_u32_u24 v229, 5, v228
    v_sub_u32 v226, v226, v229            ; qq
    v_lshrrev_b32 v229, 1, v226
    v_lshlrev_b32 v229, 5, v229
    v_and_b32 v230, 1, v226
    v_lshl_add_u32 v229, v230, 3, v229
    v_cmp_eq_u32 vcc, 4, v226
    v_cndmask_b32 v230, 4, 3, vcc
    v_lshlrev_b32 v228, v230, v228
    v_add3_u32 v245, v227, v228, v229
    v_mov_b32 v226, 2000
    v_cmp_gt_u32 vcc, 240, v242
    v_cndmask_b32 v245, v226, v245, vcc
    v_add_u32 v245, {IMG}, v245
    v_bfe_u32 v226, v240, 2, 1
    v_and_b32 v227, 3, v240
    v_lshrrev_b32 v228, 3, v240
    v_lshl_add_u32 v227, v228, 2, v227
    v_lshl_add_u32 v229, v226, 3, v227
    v_add_u32 v230, 8, v227
    v_cmp_lt_u32 vcc, 7, v227
    v_cndmask_b32 v229, v229, v230, vcc
    v_min_u32 v229, 20, v229
    v_mul_u32_u24 v229, 80, v229
    v_add_u32 v229, {IMG}, v229
    v_lshl_add_u32 v238, v241, 4, v229
    v_lshl_add_u32 v239, v241, 3, v229
    v_and_b32 v226, 15, v240
    v_lshrrev_b32 v227, 4, v240
    v_lshlrev_b32 v227, 10, v227
    v_lshl_add_u32 v228, v226, 4, v227
    v_lshl_add_u32 v236, v241, 8, v228    ; main
    v_lshl_add_u32 v228, v226, 3, v227
    s_bfe_u32 s3, {HEAD}, 0x20001         ; (h&7)>>1
    s_sub_u32 s4, 4, s3
    s_lshl_b32 s4, s4, 12
    s_lshl_b32 s5, s3, 7
    s_add_u32 s4, s4, s5
    v_add_u32 v228, s4, v228
    v_cmp_gt_u32 vcc, 32, {LANE}
    v_cndmask_b32 v237, v255, v228, vcc
    s_lshr_b32 s4, {HEAD}, 3
    s_mul_i32 s4, s4, 5
    s_add_u32 s4, s4, s3
    s_add_u32 s4, s4, 54
    s_lshl_b32 s4, s4, 12
    s_and_b32 s5, {HEAD}, 1
    s_lshl_b32 s5, s5, 9
    s_add_u32 s4, s4, s5
    s_lshr_b32 s5, {T1}, 1
    s_mul_i32 s5, s5, {HO_RB}
    s_add_u32 s4, s4, s5
    s_and_b32 s5, {T1}, 1
    s_lshl_b32 s5, s5, 11
    s_add_u32 {T3}, s4, s5
    s_lshr_b32 s3, {HEAD}, 3
    s_add_u32 s3, s3, 9
    s_lshl_b32 s3, s3, 11
    s_add_u32 {U1}, s3, {OFF_FL}
    v_mov_b32 v230, {f2u(LOG2E)}
    v_mov_b32 v231, {f2u(-LOG2E)}
    """)
    for i in range(3):
        Rw = 6*i; Lg = 18; E = 28; B = 50 + 10*i
        a(f"s_waitcnt vmcnt({4-2*i})")
        for p in range(5):
            a(f"v_lshlrev_b32 v{Lg+2*p}, 16, v{Rw+p}\nv_and_b32 v{Lg+1+2*p}, 0xffff0000, v{Rw+p}")
        a(f"v_max3_f32 v226, v{Lg}, v{Lg+1}, v{Lg+2}\nv_min3_f32 v227, v{Lg}, v{Lg+1}, v{Lg+2}")
        for p in range(3, 9, 2): a(f"v_max3_f32 v226, v226, v{Lg+p}, v{Lg+p+1}\nv_min3_f32 v227, v227, v{Lg+p}, v{Lg+p+1}")
        a(f"""
        v_max_f32 v226, v226, v{Lg+9}
        v_min_f32 v227, v227, v{Lg+9}
        v_mov_b32 v228, v226
        v_mov_b32 v229, v227
        v_permlane32_swap_b32 v226, v228
        v_permlane32_swap_b32 v227, v229
        v_max_f32 v226, v226, v228
        v_min_f32 v227, v227, v229
        v_mul_f32 v226, v231, v226
        v_mul_f32 v228, v230, v227
        """)
        for p in range(5):
            a(f"v_pk_fma_f32 {P(E+2*p)}, {P(Lg+2*p)}, {P(230)}, {P(226)} op_sel_hi:[1,0,0]")
            a(f"v_pk_fma_f32 {P(E+10+2*p)}, {P(Lg+2*p)}, {P(230)}, {P(228)} op_sel_hi:[1,0,0] neg_lo:[1,0,0] neg_hi:[1,0,0]")
        for p in range(20): a(f"v_exp_f32 v{E+p}, v{E+p}")
        a(f"v_pk_add_f32 {P(226)}, {P(E)}, {P(E+2)}\nv_pk_add_f32 {P(228)}, {P(E+10)}, {P(E+12)}")
        for p in range(2, 5): a(f"v_pk_add_f32 {P(226)}, {P(226)}, {P(E+2*p)}\nv_pk_add_f32 {P(228)}, {P(228)}, {P(E+10+2*p)}")
        a(f"""
        v_add_f32 v226, v226, v227
        v_add_f32 v227, v228, v229
        v_mov_b32 v228, v226
        v_mov_b32 v229, v227
        v_permlane32_swap_b32 v226, v228
        v_permlane32_swap_b32 v227, v229
        v_add_f32 v226, v226, v228
        v_add_f32 v227, v227, v229
        v_rcp_f32 v226, v226
        v_rcp_f32 v228, v227
        """)
        for p in range(5):
            a(f"v_pk_mul_f32 {P(E+2*p)}, {P(E+2*p)}, {P(226)} op_sel_hi:[1,0]")
            a(f"v_pk_mul_f32 {P(E+10+2*p)}, {P(E+10+2*p)}, {P(228)} op_sel_hi:[1,0]")
        for p in range(10): a(f"v_cvt_pk_bf16_f32 v{B+p}, v{E+2*p}, v{E+1+2*p}")
    T('o_sm')
    wait_flags("KF_WKV", 4, 'v248', U1, "0xffff", L_GOS, 2, opt.get("slkv", 2))
    T('fkv')
    for i in range(16):
        a(f"buffer_load_dwordx4 {Q4(80+4*i)}, v243, {sWS}, {T2} offen sc1\ns_add_u32 {T2}, {T2}, 3840")
    for i in range(1, 8):
        a(f"s_waitcnt vmcnt({14-2*i})" if i > 0 else "")
        for h in range(2):
            for q in range(2): a(f"v_pk_add_f32 {P(80+4*h+2*q)}, {P(80+4*h+2*q)}, {P(80+8*i+4*h+2*q)}")
    a(f"""
    v_pk_add_f32 v[80:81], v[80:81], v[84:85]
    v_pk_add_f32 v[82:83], v[82:83], v[86:87]
    v_cvt_pk_bf16_f32 v80, v80, v81
    v_cvt_pk_bf16_f32 v81, v82, v83
    ds_write_b64 v245, v[80:81]
    s_waitcnt lgkmcnt(0)
    """)
    T('o_part')
    lds_arrive(L_IMG)
    lds_spin("KF_IS", 4)
    a(f"""
    ds_read_b128 v[0:3], v238
    ds_read_b128 v[4:7], v238 offset:32
    ds_read_b64 v[8:9], v239 offset:64
    s_waitcnt lgkmcnt(0)
    """)
    for i in range(3):
        D = 80 + 16*i; B = 50 + 10*i
        a(f"""
        v_mfma_f32_32x32x16_bf16 v[{D}:{D+15}], v[0:3], {Q4(B)}, 0
        v_mfma_f32_32x32x16_bf16 v[{D}:{D+15}], v[4:7], {Q4(B+4)}, v[{D}:{D+15}]
        v_mfma_f32_32x32x8_bf16 v[{D}:{D+15}], v[8:9], {P(B+8)}, v[{D}:{D+15}]
        """)
    for i in range(3):
        D = 80 + 16*i; O = 16 + 6*i
        sr = sWS if i == 0 else sA
        a(f"v_add_f32 v{D+12}, {f2u(1e-6)}, v{D+12}\nv_rcp_f32 v{D+12}, v{D+12}")
        for p in range(12): a(f"v_mul_f32 v{D+p}, v{D+12}, v{D+p}")
        for p in range(6): a(f"v_cvt_pk_bf16_f32 v{O+p}, v{D+2*p}, v{D+1+2*p}")
        a(f"""
        buffer_store_dwordx4 {Q4(O)}, v236, {sr}, {T3} offen sc1
        buffer_store_dwordx2 {P(O+4)}, v237, {sr}, {T3} offen sc1
        s_add_u32 {T3}, {T3}, {2*HO_RB}
        """)
    T('o_st')
    a(f"""
    s_lshl_b32 s5, {OB}, 5
    s_add_u32 s5, s5, {HEAD}
    s_add_u32 s5, s5, 256
    s_lshl_b32 s5, s5, 7
    s_add_u32 s5, s5, {OFF_FL}
    s_waitcnt vmcnt(0)
    """)
    lds_arrive(L_O, True)
    a(f"""
    s_waitcnt lgkmcnt(0)
    v_readfirstlane_b32 s3, v247
    s_cmp_lg_u32 s3, 3
    s_cbranch_scc1 KF_WAITO
    """)
    flag_store('s5')
    a.label("KF_WAITO")
    T('osig')
    a(f"""
    s_mul_i32 s3, {RB64}, 43
    s_lshr_b32 s3, s3, 8                  ; rb64 / 6
    s_add_u32 s3, s3, 8
    s_lshl_b32 s3, s3, 12
    s_add_u32 {U1}, s3, {OFF_FL}
    s_mov_b32 s6, -1
    s_mov_b32 s7, 0
    v_lshlrev_b32 v243, 3, {LANE}
    """)
    wait_flags("KF_WO", 4, 'v248', U1, "s[6:7]", L_GOS, 3, opt.get("slo", 2))
    T('fo')
    for d in range(4): hloads(d)
    for t in range(4):
        for i in range(2): a(f"buffer_load_dwordx2 {P(226+4*t+2*i)}, v243, {sH}, {KH} offen offset:{1024*t+512*i} sc1")
    for st in range(5):
        a(f"s_waitcnt vmcnt({[20,16,12,8,0][st]})" + (" lgkmcnt(0)" if st == 4 else ""))
        step_mfma(WR[st % 4], 80 + 16*st if st < 4 else 226, st == 0)
        if st == 0:
            for mt in range(5): a(f"ds_read_b128 {Q4(WR[0]+4*mt)}, v249 offset:{1024*mt}")
    T('gemmend')
    a("s_barrier")
    for t in range(20): a(f"ds_write_b128 v249, {Q4(4*t)} offset:{1024*t}")
    a("s_waitcnt lgkmcnt(0)")
    T('f_wr')
    a("s_barrier")
    a.label("KF_FIN")
    T.finish(sWS, WAVE, WS_SIZE - 131072)
    a.label("KF_END")
    a("s_endpgm")
    a(".p2align 5\n.type KF_TAB,@object")
    a.label("KF_TAB")
    for e in table(opt): a(".long %d, %d, %d, %d, %d, %d, %d, %d" % e)
```

```python
import sys
from asmlib import Asm
import importlib
from build import HDR, kd
NAME = "recurrent_scan__linear_kernel_hedgehog__glu_gated_geglu__prompt_kernel"
def build(stamp=False, opt={}):
    out = HDR + "; @launch grid=(256,1,1) block=(512,1,1) lds=163840\n"
    out += '.amdgcn_target "amdgcn-amd-amdhsa--gfx950"\n.text\n'
    a = Asm(); importlib.import_module(opt.get('mod','kg')).gen(a, NAME, stamp=stamp, opt=opt); out += a.render()
    out += '.section .rodata,"a"\n.p2align 6\n' + kd(NAME)
    return out
if __name__ == "__main__":
    opt = eval(sys.argv[2]) if len(sys.argv) > 2 else {}
    open(sys.argv[1], "w").write(build(stamp=opt.get("stamp", False), opt=opt))
```

```python
from asmlib import Asm, Stamper
from layout import *
import struct
WSLOT = 24576; XBASE = 98304; PHIB = 147456
SYNC = 163584
L_GOH, L_GOS, L_IMG, L_O, L_D, L_P, L_G, L_F, L_X, L_Y = [SYNC + 4*i for i in range(10)]
L_ST = SYNC + 64
IMG = 7*20480 + 15360
C0 = -2.0*0.7978845608028654*1.4426950408889634
LOG2E = 1.4426950408889634
def f2u(f): return "0x%08x" % struct.unpack("<I", struct.pack("<f", f))[0]
P = lambda r: f"v[{r}:{r+1}]"
Q4 = lambda r: f"v[{r}:{r+3}]"
DEFSTAMPS = ['bar0','loopend','pub','fh','fkv','osig','fo','gemmend']

def table(opt={}):
    rolen = {'C':0,'KV':1,'Q':2,'S':3}
    tab = []
    taken = {}; nx = [0]
    for wg in range(256):
        xcd = wg & 7; j = wg >> 3
        R = xcd & 1; Cq = xcd >> 1
        L = [('KV', Cq, r) for r in range(8)]
        L += [('Q', Cq >> 1, 4*(Cq & 1) + r) for r in range(4)]
        L += [('S', 0, 2*Cq + r) for r in range(2)]
        L += [('C', (18*Cq + i)//8, (18*Cq + i) % 8) for i in range(18)]
        role, col, r8 = L[j]
        rb = R*8 + r8
        jj = (j - 12) % 32
        cid = {'C':col, 'KV':9+col, 'Q':13+col, 'S':15}[role]
        xo = opt.get("xo", lambda R,Cq,r8,cid: (r8 + 2*cid) & 3)(R, Cq, r8, cid)
        dc = 0; da = 0
        if role == 'C':
            t = taken.setdefault(col, set())
            for cand in (7, 6, 5, 4, 3, 2, 1, 0):
                if cand not in t and (cand ^ xo) in opt.get("dutyrel", (1, 3, 4, 5)):
                    t.add(cand); da = cand; dc = (cand ^ xo) + 1; break
        if role == 'S':
            col = [[0,1,2,3,5,6,7,8], [4,9,10,11,12,13,14,15]][R][r8]
        if opt.get("bmap", 0) == 0:
            rb64 = 8*(xcd >> 1) + (j >> 2); ct = 4*(xcd & 1) + (j & 3)
        else:
            rb64 = 4*xcd + (j >> 3); ct = j & 7
        head = 4*xcd + (jj & 3); ob = jj >> 2
        assert (role in ('KV', 'Q')) == (ob >= 5)
        xj = 255
        if role == 'C' and dc == 0 and nx[0] < 50:
            xj = nx[0]; nx[0] += 1
        ob |= xj << 8
        tab.append((rolen[role], rb, col, xo | (dc << 8) | (cid << 16) | (da << 24), rb64, ct, head, ob))
    assert all(len(t) == 8 for t in taken.values()) and nx[0] == 50
    return tab

sX='s[8:11]'; sW='s[12:15]'; sWS='s[16:19]'; sDBG='s[20:23]'; sA='s[32:35]'; sH='s[36:39]'
ROLE='s24'; RB='s25'; COL='s26'; PAR='s27'; RB64='s28'; CT='s29'; HEAD='s30'; OB='s31'
WAVE='s40'; KW='s41'; KX='s42'; DC='s43'; U1='s44'; WSTR='s45'; WSTEP='s46'; WEND='s47'
MW='s48'; MX='s49'; IT='s50'; PBASE='s51'; PREG='s60'; PA='s61'; PB='s70'
T0='s71'; T1='s72'; T2='s73'; T3='s74'; KWW='s75'; FLG='s76'; SPIN='s77'
pX='s[52:53]'; pQKV='s[54:55]'; pPHI='s[56:57]'; pWO='s[58:59]'; pG='s[62:63]'; pU='s[64:65]'; pD='s[66:67]'
pOUT='s[68:69]'; pDBG='s[70:71]'; pWSp='s[72:73]'
def lo(p): return 's' + p[2:].split(':')[0]
def hi(p): return 's' + p[2:-1].split(':')[1]
def srd(a, s, ptr, size):
    b = int(s[2:].split(':')[0])
    a(f"s_mov_b32 s{b}, {lo(ptr)}\ns_mov_b32 s{b+1}, {hi(ptr)}\ns_mov_b32 s{b+2}, {size}\ns_mov_b32 s{b+3}, 0x00020000")
LANE='v250'; V16='v251'; V16B='v252'; VZ='v254'
VW=['v240','v241','v242']; VX=['v243','v244']
WR = [146, 166, 186, 206]
TOK='s65'; JW='s47'; JX='s54'; XO='s55'; DD='s53'; XJ='s52'
FL_AUX = OFF_FL + 768*128
OOB = "0x40000000"
SPINMAX = 100000

def gen(a, name, stamp=False, opt={}):
    T = Stamper(a, stamp); T.names = list(opt.get('stamps', DEFSTAMPS))
    a(f".globl {name}\n.p2align 8\n.type {name},@function")
    a.label(name)
    a(f"""
    s_cmp_ge_u32 s2, 256
    s_cbranch_scc1 KF_END
    s_load_dwordx16 s[52:67], s[0:1], 0
    s_load_dwordx4 s[68:71], s[0:1], 64
    s_load_dwordx2 s[72:73], s[0:1], 80
    s_getpc_b64 s[4:5]
KF_PC:
    s_lshl_b32 s3, s2, 5
    s_add_u32 s3, s3, KF_TAB-KF_PC
    s_load_dwordx8 s[24:31], s[4:5], s3
    """)
    T.start()
    if opt.get("amp"): a("s_memrealtime s[90:91]")
    a(f"""
    v_and_b32 {LANE}, 63, v0
    v_lshrrev_b32 v1, 6, v0
    v_readfirstlane_b32 {WAVE}, v1
    v_lshlrev_b32 {V16}, 4, {LANE}
    v_add_u32 {V16B}, 4096, {V16}
    v_mov_b32 {VZ}, 0
    v_lshrrev_b32 v1, 3, {LANE}           ; row8
    v_and_b32 v2, 7, {LANE}               ; pos
    v_lshrrev_b32 v3, 1, v1
    v_xor_b32 v4, v2, v3
    v_lshlrev_b32 v4, 4, v4
    s_lshl_b32 s3, {WAVE}, 4
    v_add_u32 v5, s3, v1
    v_mul_u32_u24 v5, 1280, v5
    v_add_u32 {VX[0]}, v5, v4
    v_xor_b32 v4, 64, v4
    v_add_u32 {VX[1]}, v5, v4
    v_add_u32 {VX[1]}, {8*1280}, {VX[1]}
    s_lshr_b32 s6, {WAVE}, 2              ; region
    s_and_b32 s7, {WAVE}, 3               ; kgroup
    s_mul_i32 {MW}, s6, 12288
    s_lshl_b32 s3, s7, 10
    s_add_u32 {MW}, {MW}, s3
    s_lshl_b32 {MX}, {WAVE}, 11
    s_add_u32 {MX}, {MX}, {XBASE}
    v_and_b32 v3, 1, v3
    s_lshl_b32 s3, s6, 1
    v_xor_b32 v3, s3, v3
    v_lshlrev_b32 v3, 1, v3
    v_xor_b32 v3, v2, v3                  ; c16 within unit
    s_lshl_b32 s3, s7, 3
    v_add_u32 v6, s3, v1                  ; k row
    """)
    for u in range(3):
        a(f"""
        v_add_u32 v4, {8*u}, v3
        v_mul_u32_u24 v5, 52, v4
        v_lshrrev_b32 v5, 8, v5               ; seg
        v_mul_u32_u24 v7, 5, v5
        v_sub_u32 v7, v4, v7
        v_lshlrev_b32 {VW[u]}, 3, v7
        v_and_b32 v{10+2*u}, 1, v5
        v_lshrrev_b32 v{11+2*u}, 1, v5
        """)
    a(f"""
    v_add_u32 v171, 1024, {V16}
    v_mov_b32 v255, {OOB}
    v_cmp_gt_u32 vcc, 16, {LANE}
    v_cndmask_b32 v171, v255, v171, vcc
    s_mov_b32 {SPIN}, 0
    s_waitcnt lgkmcnt(0)
    """)
    srd(a, sX, pX, 2621440); srd(a, sW, pQKV, 640*3840)
    srd(a, sWS, pWSp, WS_SIZE); srd(a, sDBG, pDBG, 256); srd(a, sA, pQKV, 640*3840); srd(a, sH, pWSp, WS_SIZE)
    a(f"""
    s_lshr_b32 {XJ}, {OB}, 8
    s_and_b32 {OB}, {OB}, 0xff
    s_cmp_eq_u32 {ROLE}, 3
    s_cbranch_scc1 KF_SPARE
    """)
    T('gemm0')
    a(f"""
    s_mov_b32 {JW}, 0
    s_and_b32 {XO}, {PAR}, 3
    s_mul_i32 s3, {RB}, {128*1280}
    v_add_u32 {VX[0]}, s3, {VX[0]}
    v_add_u32 {VX[1]}, s3, {VX[1]}
    s_xor_b32 {T0}, {JW}, {XO}
    s_lshr_b32 {KX}, {T0}, 1
    s_lshl_b32 {KX}, {KX}, 7
    s_mov_b32 m0, {MX}
    s_mov_b32 {WSTR}, 3840
    buffer_load_dwordx4 {VX[0]}, {sX}, {KX} offen lds
    s_add_u32 m0, {MX}, 1024
    s_lshr_b32 {T1}, {WAVE}, 2            ; region
    buffer_load_dwordx4 {VX[1]}, {sX}, {KX} offen lds
    s_mov_b32 {PA}, 40
    s_mov_b32 {PB}, 80
    s_cmp_lg_u32 {ROLE}, 0
    s_cbranch_scc1 KF_SETQKV
    s_mov_b32 {WSTR}, 3456
    s_cmp_eq_u32 {T1}, 0
    s_cselect_b32 s12, {lo(pG)}, {lo(pU)}
    s_cselect_b32 s13, {hi(pG)}, {hi(pU)}
    s_mov_b32 s14, {640*3456}
    s_mul_i32 {PBASE}, {COL}, 192
    s_mov_b32 {PREG}, 0
    s_branch KF_SET2
KF_SETQKV:
    s_mul_i32 {PBASE}, {COL}, 320
    s_mov_b32 {PREG}, 160
    s_cmp_eq_u32 {ROLE}, 2
    s_cbranch_scc1 KF_SET2
    s_mul_i32 {PBASE}, {COL}, 160
    s_add_u32 {PBASE}, {PBASE}, 640
    s_mov_b32 {PREG}, 80
    s_mov_b32 {PA}, 640
    s_mov_b32 {PB}, 40
KF_SET2:
    s_lshl_b32 {WSTEP}, {WSTR}, 5
    s_mul_i32 {KW}, {T0}, {WSTEP}
    s_mov_b32 {JX}, 0
    s_mov_b32 {DC}, {KX}
    v_mul_u32_u24 v6, {WSTR}, v6
    s_mul_i32 s3, {T1}, {PREG}
    s_add_u32 s3, s3, {PBASE}
    s_lshl_b32 s3, s3, 1
    v_add_u32 v6, s3, v6
    s_cmp_eq_u32 {ROLE}, 0
    s_cselect_b32 s3, 8, 4                ; valid chunk count in unit 2
    v_cmp_gt_u32 vcc, s3, v3
    """)
    for u in range(3):
        a(f"""
        v_mad_u32_u24 {VW[u]}, v{10+2*u}, {PA}, {VW[u]}
        v_mad_u32_u24 {VW[u]}, v{11+2*u}, {PB}, {VW[u]}
        v_lshl_add_u32 {VW[u]}, {VW[u]}, 1, v6
        """)
    a(f"v_cndmask_b32 {VW[2]}, v255, {VW[2]}, vcc")
    def adv_x(): a(f"s_add_u32 {JX}, {JX}, 128\ns_xor_b32 {KX}, {JX}, {DC}")
    def adv_w(): a(f"s_add_u32 {JW}, {JW}, 1\ns_xor_b32 {KW}, {JW}, {XO}\ns_mul_i32 {KW}, {KW}, {WSTEP}")
    def dma_w(slot):
        return [f"s_add_u32 m0, {MW}, {slot*WSLOT + u*4096}\nbuffer_load_dwordx4 {VW[u]}, {sW}, {KW} offen lds" for u in range(3)]
    def dma_x(xs):
        return [f"s_add_u32 m0, {MX}, {xs*16384 + i*1024}\nbuffer_load_dwordx4 {VX[i]}, {sX}, {KX} offen lds" for i in range(2)]
    for t in dma_w(0): a(t)
    adv_w(); adv_x()

    def sync_zero():
        a(f"v_and_b32 v1, 15, {LANE}\nv_lshlrev_b32 v1, 2, v1\nv_add_u32 v1, {SYNC}, v1\nds_write_b32 v1, {VZ}")
    def stats_load():
        a(f"""
        s_bfe_u32 s3, {PAR}, 0x80010
        s_lshl_b32 s3, s3, 3
        s_lshl_b32 s5, {RB}, 7
        s_add_u32 s5, s5, s3
        s_add_u32 {U1}, s5, {WAVE}            ; row
        s_mul_i32 s3, {U1}, 1280
        buffer_load_dwordx4 v[160:163], {V16}, {sX}, s3 offen
        buffer_load_dwordx4 v[164:167], v171, {sX}, s3 offen
        """)
    def stats_calc():
        b = 160
        S, Qq, t = f"v{b+8}", f"v{b+9}", f"v{b+10}"
        a(f"s_mov_b32 s6, 0x3f803f80\nv_mov_b32 {S}, 0\nv_mov_b32 {Qq}, 0")
        for q in range(8): a(f"v_dot2c_f32_bf16 {S}, s6, v{b+q}\nv_dot2c_f32_bf16 {Qq}, v{b+q}, v{b+q}")
        for m in ["quad_perm:[1,0,3,2]", "quad_perm:[2,3,0,1]", "row_half_mirror", "row_mirror"]:
            a(f"v_add_f32_dpp {S}, {S}, {S} {m} row_mask:0xf bank_mask:0xf\nv_add_f32_dpp {Qq}, {Qq}, {Qq} {m} row_mask:0xf bank_mask:0xf")
        for w in ["16", "32"]:
            a(f"""
            v_mov_b32 v{b}, {S}
            v_mov_b32 v{b+1}, {Qq}
            v_permlane{w}_swap_b32 {S}, v{b}
            v_permlane{w}_swap_b32 {Qq}, v{b+1}
            v_add_f32 {S}, {S}, v{b}
            v_add_f32 {Qq}, {Qq}, v{b+1}
            """)
        a(f"""
        v_mul_f32 {S}, {f2u(1/640)}, {S}
        v_mul_f32 {t}, {S}, {S}
        v_mul_f32 {Qq}, {f2u(1/640)}, {Qq}
        v_sub_f32 {Qq}, {Qq}, {t}
        v_max_f32 {Qq}, 0, {Qq}
        v_sub_f32 {S}, 0, {S}
        v_cvt_pk_bf16_f32 v{b+2}, {S}, {S}
        v_cvt_pk_bf16_f32 {t}, {Qq}, {Qq}
        v_and_b32 {t}, 0xffff0000, {t}
        v_add_f32 {t}, {f2u(1e-5)}, {t}
        v_cvt_pk_bf16_f32 {t}, {t}, {t}
        v_and_b32 {t}, 0xffff0000, {t}
        v_sqrt_f32 {t}, {t}
        v_cvt_pk_bf16_f32 {t}, {t}, {t}
        v_and_b32 v{b+3}, 0xffff0000, {t}
        s_lshl_b32 s3, {WAVE}, 3
        s_add_u32 s3, s3, {L_ST}
        v_mov_b32 {t}, s3
        ds_write_b64 {t}, {P(b+2)}
        buffer_load_dword v253, {VZ}, {sDBG}, 0 offen sc1
        """)
    def stats_out(tag, wv=0):
        a(f"""
        s_cmp_lg_u32 {WAVE}, {wv}
        s_cbranch_scc1 {tag}
        v_and_b32 v160, 7, {LANE}
        v_lshlrev_b32 v160, 3, v160
        v_add_u32 v160, {L_ST}, v160
        ds_read_b64 v[162:163], v160
        v_lshlrev_b32 v161, 3, {LANE}
        s_lshl_b32 s3, {U1}, 4
        s_add_u32 s3, s3, {OFF_ST}
        s_mov_b64 exec, 0xffff
        s_waitcnt lgkmcnt(0)
        buffer_store_dwordx2 v[162:163], v161, {sWS}, s3 offen sc1
        s_mov_b64 exec, -1
{tag}:
        """)
    def get_token(tag):
        a(f"""
{tag}:
        v_readfirstlane_b32 {TOK}, v253
        s_cmp_lg_u32 {TOK}, 0
        s_cbranch_scc1 {tag}_X
        s_add_u32 {SPIN}, {SPIN}, 1
        s_cmp_gt_u32 {SPIN}, {SPINMAX}
        s_cbranch_scc1 {tag}_X
        s_sleep 8
        buffer_load_dword v253, {VZ}, {sDBG}, 0 offen sc1
        s_waitcnt vmcnt(0)
        s_branch {tag}
{tag}_X:
        """)
    def flag_store(soff, vt='v246', vd='v247'):
        a(f"""
        v_lshlrev_b32 {vt}, 2, {LANE}
        v_mov_b32 {vd}, {TOK}
        s_mov_b32 exec_hi, 0
        buffer_store_dword {vd}, {vt}, {sWS}, {soff} offen sc1
        s_mov_b32 exec_hi, -1
        """)
    def aux_signal(tag, wv=0, sel=WAVE):
        get_token(tag + "T")
        a(f"""
        s_cmp_lg_u32 {sel}, {wv}
        s_cbranch_scc1 {tag}
        s_bfe_u32 s4, {PAR}, 0x80010
        s_lshl_b32 s4, s4, 4
        s_add_u32 s4, s4, {RB}
        s_lshl_b32 s4, s4, 7
        s_add_u32 s4, s4, {OFF_FL + 512*128}
        """)
        flag_store('s4', 'v160', 'v161')
        a.label(tag)
    def kww_init():
        a(f"""
        s_mul_i32 s3, {WAVE}, 14
        s_cmp_eq_u32 {WAVE}, 3
        s_cselect_b32 s3, 41, s3
        s_mul_i32 s4, {WAVE}, 5
        s_add_u32 s4, s4, 34
        s_cmp_ge_u32 {WAVE}, 4
        s_cselect_b32 {FLG}, s4, s3
        s_mul_i32 {KWW}, {CT}, {W2_CT}
        s_mul_i32 s4, {FLG}, 5120
        s_add_u32 {KWW}, {KWW}, s4
        s_add_u32 {KWW}, {KWW}, {OFF_W2}
        """)
    def wloads(R, srdn=sWS):
        L = [f"buffer_load_dwordx4 {Q4(R+4*mt)}, {V16}, {srdn}, {KWW} offen offset:{1024*mt} sc1" for mt in range(4)]
        L.append(f"buffer_load_dwordx4 {Q4(R+16)}, {V16B}, {srdn}, {KWW} offen sc1\ns_add_u32 {KWW}, {KWW}, 5120")
        return L

    LB = MW
    RLB = 131072
    def rl_setup():
        a(f"""
        s_lshl_b32 s3, {OB}, 5
        s_add_u32 s3, s3, {HEAD}
        s_lshl_b32 s3, s3, 2
        s_add_u32 s3, s3, {WAVE}
        s_sub_u32 s3, s3, 4                   ; job id 0..639
        s_lshl_b32 s4, {XJ}, 1
        s_add_u32 s4, s4, {WAVE}
        s_add_u32 s4, s4, 638                 ; 640..739
        s_cmp_lt_u32 {WAVE}, 4
        s_cselect_b32 s3, s4, s3
        s_mul_i32 s6, s3, 6554
        s_lshr_b32 s6, s6, 16                 ; ks
        s_mul_i32 s4, s6, 10
        s_sub_u32 s7, s3, s4                  ; line
        v_lshrrev_b32 v183, 3, {LANE}
        v_and_b32 v184, 7, {LANE}
        v_lshlrev_b32 v184, 4, v184
        v_mad_u32_u24 v184, v183, v185, v184
        s_lshl_b32 s3, s7, 7
        v_add_u32 v184, s3, v184              ; row8*1280 + line*128 + pos*16
        """.replace("v_mad_u32_u24 v184, v183, v185, v184", "v_mul_u32_u24 v185, 1280, v183\n        v_add_u32 v184, v185, v184"))
        for m in range(4):
            a(f"""
            s_lshl_b32 s3, s7, 2
            s_add_u32 s3, s3, {m}
            s_mul_i32 s4, s3, 52
            s_lshr_b32 s4, s4, 8
            s_mul_i32 s5, s4, 5
            s_sub_u32 s5, s3, s5
            s_mul_i32 s4, s4, {W2_CT}
            s_lshl_b32 s5, s5, 10
            s_add_u32 s4, s4, s5
            s_mul_i32 s5, s6, 5120
            s_add_u32 s4, s4, s5
            s_add_u32 s4, s4, {OFF_W2}
            s_cmp_ge_u32 s6, 74
            s_cselect_b32 s4, {OOB}, s4
            v_add_u32 v{178+m}, s4, {V16}
            """)
        a(f"""
        s_lshl_b32 s7, {WAVE}, 12
        s_add_u32 s7, s7, {RLB - 2*4096}
        v_lshrrev_b32 v185, 4, {LANE}
        v_bfe_u32 v186, {LANE}, 2, 2
        v_lshl_add_u32 v185, v185, 3, v186
        v_and_b32 v186, 3, {LANE}
        v_lshlrev_b32 v186, 3, v186
        v_lshl_add_u32 v185, v185, 7, v186
        v_add_u32 v182, s7, v185
        ; source rows
        s_cmp_ge_u32 s6, 54
        s_cselect_b32 s36, {lo(pWO)}, {lo(pD)}
        s_cselect_b32 s37, {hi(pWO)}, {hi(pD)}
        s_cselect_b32 s3, 640, 1728
        s_mul_i32 s38, s3, 1280
        s_cbranch_scc1 RL_WO_@
        s_mul_i32 s3, s6, {32*1280}
        v_add_u32 v184, s3, v184
        v_add_u32 v185, {8*1280}, v184
        v_add_u32 v186, {16*1280}, v184
        v_add_u32 v187, {24*1280}, v184
        s_branch RL_GO_@
RL_WO_@:
        s_sub_u32 s3, s6, 54
        s_mul_i32 s4, s3, 52
        s_lshr_b32 s4, s4, 8
        s_mul_i32 s5, s4, 5
        s_sub_u32 s5, s3, s5
        s_mul_i32 s4, s4, 160
        s_mul_i32 s3, s5, 40
        s_cmp_eq_u32 s5, 4
        s_cselect_b32 s3, 16, s3
        s_add_u32 s4, s4, s3
        s_mul_i32 s4, s4, 1280
        v_add_u32 v184, s4, v184
        s_cmp_eq_u32 s5, 4
        s_cselect_b32 s3, 16, 0
        s_cselect_b32 s4, 40, 8
        s_cselect_b32 s5, 40, 12
        s_mul_i32 s3, s3, 1280
        s_mul_i32 s4, s4, 1280
        s_mul_i32 s5, s5, 1280
        v_lshrrev_b32 v183, 2, v183
        v_mul_lo_u32 v183, v183, s3
        v_add_u32 v184, v183, v184
        v_add_u32 v185, s4, v184
        v_add_u32 v186, s5, v185
        v_add_u32 v187, s4, v186
RL_GO_@:
        """.replace("s_cselect_b32 s3, 640, 1728", "s_movk_i32 s3, 1728\n        s_cselect_b32 s3, 640, s3").replace("@", str(rl_setup.n)))
        rl_setup.n += 1
    rl_setup.n = 0
    def rl_dma():
        a(f"s_lshl_b32 s7, {WAVE}, 12\ns_add_u32 s7, s7, {RLB - 2*4096}")
        for g in range(4):
            a(f"s_add_u32 m0, s7, {g*1024}\nbuffer_load_dwordx4 v{184+g}, {sH}, 0 offen lds")
    def rl_out():
        for m in range(4):
            for i in range(2):
                a(f"ds_read_b64_tr_b16 {P(188+4*m+2*i)}, v182 offset:{i*512 + m*32}")
        for m in range(4):
            a(f"s_waitcnt lgkmcnt({6-2*m})\nbuffer_store_dwordx4 {Q4(188+4*m)}, v{178+m}, {sWS}, 0 offen sc1")
    def rl_guard(tag):
        if opt.get("norl"): a(f"s_branch {tag}")
        a(f"s_cmp_eq_u32 {XJ}, 255\ns_cselect_b32 s3, 4, 2\ns_cmp_lt_u32 {WAVE}, s3\ns_cbranch_scc1 {tag}")
    a(f"""
    s_cmp_lg_u32 {ROLE}, 0
    s_cbranch_scc1 KF_QKVLOOP
    """)

    DPOS = opt.get("dpos", {6: {3:[3,7,10], 5:[2,4,6,8,10]}, 5: {3:[3,6,8], 5:[1,3,5,7,8]}})
    def mainloop(tag, ntt, nct, RW, RX, FA, FB, pre, post0, late, tailw, duty):
        nm = ntt*nct
        per = opt.get("per", 3)
        xev = opt.get("xev", 2) if nct == 3 else opt.get("xevq", 2)
        def reads(jj, s, F):
            L = []
            xs = (jj >> 1) & 1; ks = (jj & 1)*2 + s
            for t in range(ntt):
                L.append(f"ds_read_b128 {Q4(F+4*t)}, {RX[ks]} offset:{xs*16384 + t*4096}")
            for c in range(nct):
                b = F + 4*ntt + 4*c
                for i in range(2):
                    L.append(f"ds_read_b64_tr_b16 {P(b+2*i)}, {RW[jj>>1][c]} offset:{(jj&1)*WSLOT + (16*s+4*i)*128}")
            return L
        def mfmas(F):
            L = []
            for c in range(nct):
                for t in range(ntt):
                    d = 16*(t*nct + c); b = F + 4*ntt + 4*c
                    L.append(f"v_mfma_f32_32x32x16_bf16 v[{d}:{d+15}], {Q4(b)}, {Q4(F+4*t)}, v[{d}:{d+15}]")
            return L
        def phase(M, R, g0, D, pos, X=None, xevery=2):
            R = list(R); n = 0
            for i, m in enumerate(M):
                d = None
                if (g0 + i) in pos:
                    d = D[pos.index(g0 + i)].split("\n"); a(d[0])
                a(m)
                if d: a(d[1])
                for _ in range(per):
                    if R: a(R.pop(0))
                if X and i % xevery == xevery - 1: a(X.pop(0)); n += 1
            for r in R: a(r)
            return n
        pre()
        sync_zero()
        kww_init()
        if nct == 3:
            for r in list(range(178, 183)) + list(range(184, 188)): a(f"v_mov_b32 v{r}, v255")
            rl_guard(f"{tag}_RL0"); rl_setup(); a.label(f"{tag}_RL0")
        for r in range(16*nm): a(f"v_mov_b32 v{r}, 0")
        for t in dma_w(1): a(t)
        adv_w()
        stats_load()
        a(f"s_mov_b32 {IT}, 4")
        T('pre0')
        a(f"s_waitcnt vmcnt(5)\ns_barrier")
        T('bar0')
        for t in reads(0, 0, FA): a(t)
        for t in dma_w(2): a(t)
        adv_w()
        for i, t in enumerate(dma_x(1) + dma_w(3)):
            if DPOS[nm][5][i] < nm: a(t)
        a(f"s_branch {tag}_ENTRY")
        a.label(f"{tag}_LOOP")
        for jj in range(4):
            a(f"s_waitcnt vmcnt({6 if jj%2==0 else 8}) lgkmcnt(0)\ns_barrier")
            D = (dma_x(((jj >> 1) + 1) & 1) if jj % 2 == 0 else []) + dma_w((jj + 3) & 3)
            pos = DPOS[nm][len(D)]
            phase(mfmas(FB), reads(jj, 0, FA), 0, D, pos)
            if jj == 0: a.label(f"{tag}_ENTRY")
            a("s_waitcnt lgkmcnt(0)")
            phase(mfmas(FA), reads(jj, 1, FB), nm, D, pos)
            if jj % 2 == 0: adv_x()
            adv_w()
            if duty:
                a(f"s_sub_u32 {DD}, {DD}, 1\ns_cmp_eq_u32 {DD}, 0\ns_cbranch_scc1 {tag}_HDT{jj}\n{tag}_HDR{jj}:")
            if jj == 1: a(f"s_cmp_eq_u32 {IT}, 2\ns_cbranch_scc1 {tag}_HA\n{tag}_HAR:")
            if jj == 2: a(f"s_cmp_ge_u32 {IT}, {3 if nct == 3 else 4}\ns_cbranch_scc1 {tag}_HS\n{tag}_HSR:")
            if jj == 3: a(f"s_cmp_eq_u32 {IT}, 4\ns_cbranch_scc1 {tag}_HG\n{tag}_HGR:")
        if stamp and any(n.startswith('it') for n in T.names):
            for k in range(1, 5):
                a(f"s_cmp_lg_u32 {IT}, {5-k}\ns_cbranch_scc1 {tag}_IS{k}")
                T(f'it{k}')
                a.label(f"{tag}_IS{k}")
        a(f"""
        s_sub_u32 {IT}, {IT}, 1
        s_cmp_lg_u32 {IT}, 0
        s_cbranch_scc1 {tag}_LOOP
        """)
        dual = nct != 3
        log = ['W17']*3 + ['W18']*3
        def wait(tags, extra=""):
            last = max(i for i, t in enumerate(log) if t in tags)
            a(f"s_waitcnt vmcnt({len(log) - 1 - last}){extra}")
        X = []
        def run(M, R, g0, D, pos, ev):
            before = list(X)
            k = phase(M, R, g0, D, pos, X, ev)
            log.extend('L' if x in late else 'T' for x in before[:k])
        for jj in range(4):
            if jj == 0: a("s_waitcnt vmcnt(6) lgkmcnt(0)")
            else: wait([['W17'], ['W18', 'X9'], ['W19']][jj-1], " lgkmcnt(0)")
            a("s_barrier")
            if jj == 0:
                a(f"s_mov_b32 {U1}, {FL_AUX}\nv_mov_b32 v253, 0\nbuffer_load_dword v253, {VZ if dual else 'v245'}, {sWS}, {U1} offen sc1"); log.append('P')
            D, pos = (dma_x(1) + dma_w(3), DPOS[nm][5]) if jj == 0 else ([], [])
            if jj == 0: log += ['X9']*2 + ['W19']*3
            run(mfmas(FB), reads(jj, 0, FA), 0, D, pos, xev)
            ev = xev
            if jj == 1 or (jj == 2 and dual):
                wait(['P'])
                a(f"v_cmp_ne_u32 vcc, {TOK}, v253\ns_nop 4\ns_cbranch_vccnz {tag}_HBT{jj}\n{tag}_HBR{jj}:")
                if jj == 1: T('aux')
                if dual and jj == 1:
                    a(f"v_mov_b32 v253, 0\nbuffer_load_dword v253, v245, {sWS}, {U1} offen sc1"); log.append('P')
                    X.extend(tailw)
                elif dual: X[0:0] = late; ev = 1
                else: X.extend(list(late) + list(tailw)); ev = 1
            a("s_waitcnt lgkmcnt(0)")
            run(mfmas(FA), reads(jj, 1, FB), nm, D, pos, ev)
        a("s_waitcnt lgkmcnt(0)\ns_barrier")
        run(mfmas(FB), [], 0, [], [], xev)
        for x in X: a(x); log.append('L' if x in late else 'T')
        wait(['L'])
        a(f"s_branch {tag}_DONE")
        a.label(f"{tag}_HS")
        if nct == 3: a(f"s_cmp_eq_u32 {IT}, 3\ns_cbranch_scc1 {tag}_HS1")
        stats_calc()
        a(f"s_branch {tag}_HSR")
        if nct == 3:
            a.label(f"{tag}_HS1")
            rl_guard(f"{tag}_HSR"); rl_out()
            a(f"s_branch {tag}_HSR")
        a.label(f"{tag}_HG")
        stats_out(f"{tag}_HG0")
        if nct == 3:
            rl_guard(f"{tag}_HGR")
            rl_dma()
        a(f"s_branch {tag}_HGR")
        a.label(f"{tag}_HA")
        post0()
        aux_signal(f"{tag}_HG2")
        a(f"s_branch {tag}_HAR")
        for jj in ((1, 2) if dual else (1,)): a(f"{tag}_HBT{jj}:\ns_waitcnt lgkmcnt(0)\ns_call_b64 s[6:7], {tag}_HB\ns_branch {tag}_HBR{jj}")
        a(f"""
{tag}_HB:
        s_add_u32 {SPIN}, {SPIN}, 1
        s_cmp_gt_u32 {SPIN}, {SPINMAX}
        s_cbranch_scc1 {tag}_HBX
        s_sleep 2
        buffer_load_dword v253, v245, {sWS}, {U1} offen sc1
        s_waitcnt vmcnt(0)
        v_cmp_ne_u32 vcc, {TOK}, v253
        s_nop 4
        s_cbranch_vccnz {tag}_HB
{tag}_HBX:
        s_setpc_b64 s[6:7]
        """)
        if duty:
            for jj in range(4): a(f"{tag}_HDT{jj}:\ns_call_b64 s[6:7], {tag}_HD\ns_branch {tag}_HDR{jj}")
            a.label(f"{tag}_HD")
            duty()
            a("s_setpc_b64 s[6:7]")
        a.label(f"{tag}_DONE")

    def xread_addrs(RX, tokbase_s):
        a(f"""
        v_and_b32 v1, 31, {LANE}
        v_lshrrev_b32 v2, 5, {LANE}
        v_bfe_u32 v3, {LANE}, 1, 3
        v_xor_b32 v3, v2, v3
        v_lshlrev_b32 v3, 4, v3
        v_add_u32 v1, {tokbase_s}, v1
        v_lshl_add_u32 v3, v1, 7, v3
        v_add_u32 {RX[0]}, {XBASE}, v3
        s_and_b32 s3, {XO}, 1
        s_lshl_b32 s3, s3, 6
        v_xor_b32 {RX[0]}, s3, {RX[0]}
        """)
        for s in range(1, 4): a(f"v_xor_b32 {RX[s]}, {32*s}, {RX[0]}")
    def wread_addrs(RW, nct, tile0_s):
        a(f"""
        v_bfe_u32 v1, {LANE}, 2, 2            ; r
        v_lshrrev_b32 v2, 5, {LANE}           ; hh
        v_lshl_add_u32 v2, v2, 3, v1
        v_lshl_add_u32 v11, v2, 7, v11
        v_mul_u32_u24 v2, 12288, v10
        v_add_u32 v11, v2, v11
        v_lshrrev_b32 v1, 1, v1
        v_lshlrev_b32 v2, 1, v10
        v_xor_b32 v1, v1, v2
        """)
        for c in range(nct):
            a(f"""
            s_add_u32 s3, {tile0_s}, {c}
            s_and_b32 s4, s3, 3
            s_lshr_b32 s3, s3, 2
            s_lshl_b32 s3, s3, 12
            v_xor_b32 v2, s4, v1
            v_lshl_add_u32 v2, v2, 5, v11
            v_add_u32 {RW[0][c]}, s3, v2
            v_add_u32 {RW[1][c]}, {2*WSLOT}, {RW[0][c]}
            """)
    class Sprinkle:
        def __init__(s, items, per): s.items = list(items); s.per = per; s.n = 0
        def __call__(s, text):
            for l in text.split("\n"):
                if not l.strip(): continue
                a(l); s.n += 1
                if s.items and s.n % s.per == 0: a(s.items.pop(0))
        def flush(s):
            for i in s.items: a(i)
            s.items = []

    RWc = [['v230','v231','v232'], ['v233','v234','v235']]; RXc = ['v236','v237','v238','v239']
    def c_pre():
        a(f"""
        s_lshr_b32 {T0}, {WAVE}, 2
        s_and_b32 {T1}, {WAVE}, 3
        s_lshl_b32 {T2}, {T0}, 6
        s_mul_i32 {T3}, {T1}, 3
        s_bfe_u32 {DD}, {PAR}, 0x80008
        s_cmp_eq_u32 {T0}, 0
        s_cselect_b32 {DD}, {DD}, 0
        v_bfe_u32 v10, {LANE}, 4, 1
        v_and_b32 v11, 1, {LANE}
        v_lshlrev_b32 v11, 4, v11
        v_bfe_u32 v12, {LANE}, 1, 1
        v_lshl_add_u32 v11, v12, 3, v11
        """)
        wread_addrs(RWc, 3, T3); xread_addrs(RXc, T2)
        a(f"""
        v_and_b32 v1, 31, {LANE}
        v_and_b32 v2, 7, {LANE}
        v_lshlrev_b32 v2, 3, v2
        v_lshrrev_b32 v3, 3, v1
        v_lshl_add_u32 v2, v3, 7, v2
        s_lshl_b32 s3, {RB}, 7
        s_add_u32 s3, s3, {T2}
        s_lshl_b32 s3, s3, 4
        s_add_u32 s3, s3, {OFF_ST}
        v_add_u32 v96, s3, v2
        v_and_b32 v2, 3, v1
        v_bfe_u32 v3, v1, 2, 1
        v_lshl_add_u32 v2, v3, 3, v2
        v_bfe_u32 v3, v1, 3, 1
        v_lshl_add_u32 v2, v3, 2, v2
        v_lshrrev_b32 v3, 4, v1
        v_mul_u32_u24 v3, 1728, v3
        v_add_u32 v2, v3, v2
        s_lshl_b32 s3, {T3}, 4
        s_add_u32 s3, s3, {PBASE}
        s_add_u32 s3, s3, {1920 + OFF_CS//8}
        v_add_lshl_u32 v97, s3, v2, 3
        s_add_u32 s3, {COL}, 1
        s_lshl_b32 s3, s3, 7
        v_and_b32 v245, 1, {LANE}
        v_mul_u32_u24 v245, s3, v245
        v_lshrrev_b32 v2, 5, {LANE}
        v_and_b32 v98, 15, {LANE}
        v_lshlrev_b32 v98, 4, v98
        v_lshl_add_u32 v98, v2, 8, v98
        v_bfe_u32 v2, {LANE}, 4, 1
        v_lshl_add_u32 v98, v2, 10, v98
        """)
    CSR = [144, 226, 228]
    c_late = [f"buffer_load_dwordx2 v[140:141], v96, {sWS}, 0 offen sc1", f"buffer_load_dwordx2 v[142:143], v96, {sWS}, 0 offen offset:512 sc1"]
    c_late += [f"buffer_load_dwordx2 {P(CSR[c])}, v97, {sWS}, 0 offen offset:{128*c} sc1" for c in range(3)]
    NTW = opt.get("ntw", 3)
    def c_duty():
        a(f"""
        s_mov_b32 s5, 0x3f803f80
        s_mul_i32 s3, {COL}, 12
        s_add_u32 s3, s3, {T3}
        s_lshl_b32 s3, s3, 3
        s_lshr_b32 s4, {PAR}, 24
        s_add_u32 s3, s3, s4
        s_lshl_b32 s3, s3, 8
        s_add_u32 s3, s3, {OFF_CSP}
        s_add_u32 s4, s3, 4096
        v_lshlrev_b32 v175, 2, {LANE}
        """)
        for c in range(3): a(f"v_mov_b32 v{172+c}, 0")
        for F in (100, 120):
            if F == 120: a("s_waitcnt lgkmcnt(0)")
            for q in range(4):
                for c in range(3): a(f"v_dot2c_f32_bf16 v{172+c}, s5, v{F+8+4*c+q}")
        a(f"buffer_store_dword v172, v175, {sWS}, s3 offen sc1\nbuffer_store_dword v173, v175, {sWS}, s3 offen offset:2048 sc1\nbuffer_store_dword v174, v175, {sWS}, s4 offen sc1")
    mainloop("KFC", 2, 3, RWc, RXc, 100, 120, c_pre, lambda: None, c_late, sum([wloads(R) for R in WR[:NTW]], []), c_duty)
    T('loopend')
    a(f"v_cmp_gt_u32 vcc, 32, {LANE}")
    for t in range(2):
        a(f"v_cndmask_b32 v{100+2*t}, 0, v{140+2*t}, vcc\nv_and_b32 v{101+2*t}, 0xffff, v{100+2*t}")
    for c in range(3):
        for t in range(2):
            d = 16*(t*3 + c)
            a(f"v_mfma_f32_32x32x8_bf16 v[{d}:{d+15}], {P(CSR[c])}, {P(100+2*t)}, v[{d}:{d+15}]")
    for t in range(2):
        sd = 141 + 2*t; k = 108 + 6*t
        a(f"""
        v_rcp_f32 v99, v{sd}
        v_mul_f32 v{k+4}, v{sd}, v{sd}
        v_mul_f32 v{k+2}, {f2u(C0)}, v99
        v_mul_f32 v99, v99, v99
        v_mul_f32 v99, {f2u(0.044715)}, v99
        v_mul_f32 v{k}, v99, v{k+2}
        """)
    HS = [KW, KX, WSTEP]
    a(f"""
    s_lshl_b32 s3, {RB}, 1
    s_add_u32 s3, s3, {T0}
    s_mul_i32 s5, s3, {HO_RB}
    s_mul_i32 s6, {COL}, 12
    s_add_u32 s6, s6, {T3}
    """)
    for c in range(3):
        a(f"""
        s_add_u32 s3, s6, {c}
        s_lshr_b32 s4, s3, 1
        s_lshl_b32 s4, s4, 12
        s_and_b32 s3, s3, 1
        s_lshl_b32 s3, s3, 9
        s_add_u32 s4, s4, s3
        s_add_u32 {HS[c]}, s4, s5
        """)
    NE = opt.get("early", 2)
    if NE:
        a(f"""
        s_cmp_lt_u32 {WAVE}, 4
        s_cbranch_scc1 KF_CE1
        s_mul_i32 {LB}, {WAVE}, 20480
        s_add_u32 {MX}, {KWW}, {5120*(4-NTW)}
        """)
        for sl in range(NE):
            if sl == 1:
                a(f"""
                s_sub_u32 s3, {WAVE}, 4
                s_mul_i32 s4, s3, 14
                s_cmp_eq_u32 s3, 3
                s_cselect_b32 s4, 41, s4
                s_add_u32 s4, s4, 8
                s_mul_i32 s4, s4, 5120
                s_mul_i32 s3, {CT}, {W2_CT}
                s_add_u32 s4, s4, s3
                s_add_u32 {MX}, s4, {OFF_W2}
                """)
            if sl == 3: a(f"s_cmp_ge_u32 {WAVE}, 6\ns_cbranch_scc1 KF_CE1")
            for mt in range(5):
                a(f"s_add_u32 m0, {LB}, {sl*5120 + (4096 if mt == 4 else 0)}")
                if mt < 4: a(f"buffer_load_dwordx4 {V16}, {sWS}, {MX} offen offset:{1024*mt} sc1 lds")
                else: a(f"buffer_load_dwordx4 {V16B}, {sWS}, {MX} offen sc1 lds")
                if opt.get("epace"): a(f"s_waitcnt vmcnt({opt['epace']})")
            a(f"s_add_u32 {MX}, {MX}, 5120")
        a.label("KF_CE1")
    T('c0')
    sp = Sprinkle(sum([wloads(R) for R in WR[NTW:]], []), opt.get("cper", 12))
    nst = 0
    for c in range(3):
        for t in range(2):
            d = 16*(t*3 + c); k = 108 + 6*t
            tb = 120 + (nst & 1)*12
            for p in range(4): sp(f"v_pk_mul_f32 {P(tb+2*p)}, {P(d+2*p)}, {P(d+2*p)}")
            for p in range(4): sp(f"v_pk_fma_f32 {P(tb+2*p)}, {P(tb+2*p)}, {P(k)}, {P(k+2)} op_sel_hi:[1,0,0]")
            for p in range(4): sp(f"v_pk_mul_f32 {P(tb+2*p)}, {P(tb+2*p)}, {P(d+2*p)}")
            for p in range(8): sp(f"v_exp_f32 v{tb+p}, v{tb+p}")
            for p in range(4): sp(f"v_pk_mul_f32 {P(d+2*p)}, {P(d+2*p)}, {P(d+8+2*p)}")
            for p in range(4): sp(f"v_pk_fma_f32 {P(tb+2*p)}, {P(tb+2*p)}, {P(k+4)}, {P(k+4)} op_sel_hi:[1,0,0]")
            for p in range(8): sp(f"v_rcp_f32 v{tb+p}, v{tb+p}")
            for p in range(4): sp(f"v_pk_mul_f32 {P(d+2*p)}, {P(d+2*p)}, {P(tb+2*p)}")
            for p in range(4): sp(f"v_cvt_pk_bf16_f32 v{tb+8+p}, v{d+2*p}, v{d+2*p+1}")
            a(f"buffer_store_dwordx4 {Q4(tb+8)}, v98, {sWS}, {HS[c]} offen offset:{t*2048} sc1")
            nst += 1
            if nst == 1: T('c1')
            if nst == 3: T('c3')
    sp.flush()
    a("s_branch KF_PUB")

    a.label("KF_QKVLOOP")
    RWq = [['v226','v227','v228','v229','v230'], ['v231','v232','v233','v234','v235']]; RXq = ['v236','v237','v238','v239']
    ZOFF = PHIB + 6400
    def q_post0():
        srd(a, sA, pPHI, 25600)
        a(f"""
        s_mul_i32 s4, {COL}, 6400
        s_lshl_b32 s5, {WAVE}, 10
        v_add_u32 v86, s5, {V16}
        v_cmp_gt_u32 vcc, 6400, v86
        v_cndmask_b32 v86, v255, v86, vcc
        s_add_u32 m0, s5, {PHIB}
        buffer_load_dwordx4 v86, {sA}, s4 offen lds
        """)
    def q_pre():
        a(f"""
        s_and_b32 {T0}, {WAVE}, 3
        s_lshr_b32 {T1}, {WAVE}, 2
        s_lshl_b32 {T2}, {T0}, 5
        s_mul_i32 {T3}, {T1}, 5
        v_and_b32 v10, 7, {LANE}
        v_add_u32 v245, 9, v10
        v_cmp_ne_u32 vcc, 0, v10
        v_cndmask_b32 v245, 0, v245, vcc
        v_lshlrev_b32 v245, 7, v245
        v_and_b32 v10, 1, {LANE}
        v_bfe_u32 v11, {LANE}, 1, 1
        v_bfe_u32 v12, {LANE}, 4, 1
        v_lshl_add_u32 v11, v12, 1, v11
        v_lshlrev_b32 v11, 3, v11
        """)
        wread_addrs(RWq, 5, T3); xread_addrs(RXq, T2)
        a(f"""
        v_and_b32 v1, 31, {LANE}
        v_and_b32 v2, 7, {LANE}
        v_lshlrev_b32 v2, 3, v2
        v_lshrrev_b32 v3, 3, v1
        v_lshl_add_u32 v2, v3, 7, v2
        s_lshl_b32 s3, {RB}, 7
        s_add_u32 s3, s3, {T2}
        s_lshl_b32 s3, s3, 4
        s_add_u32 s3, s3, {OFF_ST}
        v_add_u32 v80, s3, v2
        v_and_b32 v2, 3, v1
        v_bfe_u32 v3, v1, 2, 1
        v_mad_u32_u24 v2, v3, {PREG}, v2
        s_add_u32 s3, {PBASE}, {OFF_CS//8}
        v_add_u32 v2, s3, v2
        v_lshrrev_b32 v3, 3, v1
        s_lshl_b32 s3, {T3}, 2
        v_add_u32 v3, s3, v3
        """)
        for c in range(5):
            a(f"""
            v_add_u32 v4, {4*c}, v3
            v_mul_u32_u24 v5, 26, v4
            v_lshrrev_b32 v5, 8, v5
            v_mul_u32_u24 v6, 10, v5
            v_sub_u32 v4, v4, v6
            v_lshl_add_u32 v4, v4, 2, v2
            v_and_b32 v6, 1, v5
            v_mad_u32_u24 v4, v6, {PA}, v4
            v_lshrrev_b32 v6, 1, v5
            v_mad_u32_u24 v4, v6, {PB}, v4
            v_lshlrev_b32 v{81+c}, 3, v4
            """)
        a(f"""
        v_bfe_u32 v1, {LANE}, 2, 2            ; r
        v_mul_u32_u24 v1, 40, v1
        v_bfe_u32 v2, {LANE}, 1, 1
        v_bfe_u32 v3, {LANE}, 4, 1
        v_lshl_add_u32 v2, v3, 1, v2          ; idx
        v_and_b32 v3, 1, {LANE}               ; H
        v_lshrrev_b32 v4, 5, {LANE}           ; hh
        s_mul_i32 s4, {T1}, 1600
        s_add_u32 s4, s4, {PHIB}
        s_movk_i32 s3, 3200
        v_mad_u32_u24 v1, v3, s3, v1
        v_add_u32 v1, s4, v1
        v_lshl_add_u32 v5, v2, 3, v1
        v_mov_b32 v6, {ZOFF}
        v_cmp_eq_u32 vcc, v3, v4
        v_cndmask_b32 v248, v6, v5, vcc
        v_add_u32 v5, 32, v1
        v_cndmask_b32 v5, v6, v5, vcc
        v_cmp_eq_u32 vcc, 0, v2
        v_cndmask_b32 v249, v6, v5, vcc
        """)
    NTQ = opt.get("ntq", 2)
    q_late = [f"buffer_load_dwordx2 v[86:87], v80, {sWS}, 0 offen sc1"] + [f"buffer_load_dwordx2 {P(88+2*c)}, v{81+c}, {sWS}, 0 offen sc1" for c in range(5)]
    mainloop("KFQ", 1, 5, RWq, RXq, 98, 122, q_pre, q_post0, q_late, sum([wloads(R) for R in WR[:NTQ]], []), None)
    T('loopend')
    def phi_frags(F, pair):
        for Tt in range(2):
            for q in range(5):
                a(f"ds_read_b64_tr_b16 {P(F+10*Tt+2*q)}, v{248+Tt} offset:{pair*800 + 4*q*40}")
    def phi_mfma(D, F, B):
        for Tt in range(2):
            d = D + 16*Tt; f = F + 10*Tt
            a(f"v_mfma_f32_32x32x16_bf16 v[{d}:{d+15}], {Q4(f)}, {Q4(B)}, 0")
            a(f"v_mfma_f32_32x32x16_bf16 v[{d}:{d+15}], {Q4(f+4)}, {Q4(B+4)}, v[{d}:{d+15}]")
            a(f"v_mfma_f32_32x32x8_bf16 v[{d}:{d+15}], {P(f+8)}, {P(B+8)}, v[{d}:{d+15}]")
    a(f"v_cmp_gt_u32 vcc, 32, {LANE}\nv_cndmask_b32 v98, 0, v86, vcc\nv_and_b32 v99, 0xffff, v98")
    for c in range(5):
        a(f"v_mfma_f32_32x32x8_bf16 v[{16*c}:{16*c+15}], {P(88+2*c)}, v[98:99], v[{16*c}:{16*c+15}]")
    a(f"""
    v_rcp_f32 v246, v87
    s_cmp_eq_u32 {ROLE}, 2
    s_cbranch_scc1 KF_QEPI
    """)
    phi_frags(124, 0)
    phi_frags(226, 1)
    for p in range(20): a(f"v_cvt_pk_bf16_f32 v{80+p}, v{2*p}, v{2*p+1}")
    a("s_waitcnt lgkmcnt(0)")
    phi_mfma(0, 124, 80)
    for i in range(2):
        V = 40 + 20*i; O = 100 + 12*i
        for p in range(20): a(f"v_mul_f32 v{V+p}, v246, v{V+p}")
        for p in range(10): a(f"v_cvt_pk_bf16_f32 v{O+p}, v{V+2*p}, v{V+2*p+1}")
        a(f"v_mov_b32 v{O+10}, 0x3f80\nv_mov_b32 v{O+11}, 0")
    phi_mfma(32, 226, 90)
    a(f"""
    v_mul_f32 v144, {f2u(LOG2E)}, v246
    v_sub_f32 v145, 0, v144
    v_lshrrev_b32 v64, 5, {LANE}
    v_mul_u32_u24 v64, {4*18432}, v64
    v_and_b32 v65, 31, {LANE}
    v_add_u32 v65, {T2}, v65
    v_mul_u32_u24 v65, 144, v65
    v_add_u32 v64, v64, v65
    s_mul_i32 s3, {T1}, {2*18432}
    v_add_u32 v247, s3, v64
    """)
    for i in range(2):
        for q in range(3): a(f"ds_write_b128 v247, {Q4(100+12*i+4*q)} offset:{i*18432 + 80 + 16*q}")
    T('kv_sm')
    sp = Sprinkle(sum([wloads(R) for R in WR[NTQ:]], []), opt.get("kvper", 14))
    for i in range(2):
        L = 32*i; N = 124; O = 80
        sp(f"v_max3_f32 v64, v{L}, v{L+1}, v{L+2}\nv_min3_f32 v65, v{L}, v{L+1}, v{L+2}")
        for p in range(3, 19, 2):
            sp(f"v_max3_f32 v64, v64, v{L+p}, v{L+p+1}\nv_min3_f32 v65, v65, v{L+p}, v{L+p+1}")
        sp(f"v_max_f32 v64, v64, v{L+19}\nv_min_f32 v65, v65, v{L+19}")
        sp(f"v_mul_f32 v64, v145, v64\nv_mul_f32 v70, v144, v65")
        for p in range(10):
            sp(f"v_pk_fma_f32 {P(N+2*p)}, {P(L+2*p)}, {P(144)}, {P(70)} op_sel_hi:[1,0,0] neg_lo:[1,0,0] neg_hi:[1,0,0]")
            sp(f"v_pk_fma_f32 {P(L+2*p)}, {P(L+2*p)}, {P(144)}, {P(64)} op_sel_hi:[1,0,0]")
        for p in range(20): sp(f"v_exp_f32 v{N+p}, v{N+p}\nv_exp_f32 v{L+p}, v{L+p}")
        sp(f"v_pk_add_f32 {P(66)}, {P(L)}, {P(L+2)}\nv_pk_add_f32 {P(68)}, {P(N)}, {P(N+2)}")
        for p in range(2, 10):
            sp(f"v_pk_add_f32 {P(66)}, {P(66)}, {P(L+2*p)}\nv_pk_add_f32 {P(68)}, {P(68)}, {P(N+2*p)}")
        sp("v_add_f32 v66, v66, v67\nv_add_f32 v68, v68, v69\nv_rcp_f32 v66, v66\nv_rcp_f32 v68, v68")
        for p in range(10):
            sp(f"v_pk_mul_f32 {P(L+2*p)}, {P(L+2*p)}, {P(66)} op_sel_hi:[1,0]")
            sp(f"v_pk_mul_f32 {P(N+2*p)}, {P(N+2*p)}, {P(68)} op_sel_hi:[1,0]")
        order = [('P',0),('P',1),('P',2),('P',3),('P',8),('N',0),('N',1),('N',2),('N',3),('N',8),
                 ('P',4),('P',5),('P',6),('P',7),('P',9),('N',4),('N',5),('N',6),('N',7),('N',9)]
        for n, (k, p) in enumerate(order):
            b = (L if k == 'P' else N) + 2*p
            sp(f"v_cvt_pk_bf16_f32 v{O+n}, v{b}, v{b+1}")
            if n % 4 == 3: a(f"ds_write_b128 v247, {Q4(O+n-3)} offset:{i*18432 + 4*(n-3)}")
    sp.flush()
    a(f"""
    v_bfe_u32 v64, {LANE}, 2, 2
    v_lshrrev_b32 v65, 5, {LANE}
    v_lshl_add_u32 v64, v65, 3, v64
    v_mul_u32_u24 v64, 144, v64
    v_and_b32 v66, 3, {LANE}
    v_bfe_u32 v67, {LANE}, 4, 1
    v_lshl_add_u32 v66, v67, 2, v66
    v_lshl_add_u32 v64, v66, 3, v64
    s_mul_i32 s3, {WAVE}, 18432
    v_add_u32 v246, s3, v64
    v_and_b32 v66, 31, {LANE}
    v_mul_u32_u24 v65, 24, v65
    v_add_u32 v65, v65, v66
    v_lshlrev_b32 v65, 4, v65
    v_cmp_gt_u32 vcc, 24, v66
    v_cndmask_b32 v247, v255, v65, vcc
    s_lshl_b32 s3, {COL}, 3
    s_add_u32 s3, s3, {WAVE}
    s_lshl_b32 s3, s3, 4
    s_add_u32 s3, s3, {RB}
    s_mul_i32 s3, s3, 3840
    s_add_u32 s3, s3, {OFF_P}
    s_waitcnt lgkmcnt(0)
    s_barrier
    """)
    T('kv_mm')
    for s in range(8):
        F = 32 + 12*s
        for n, off in enumerate([0, 64, 80]):
            for i in range(2):
                a(f"ds_read_b64_tr_b16 {P(F+4*n+2*i)}, v246 offset:{(16*s+4*i)*144 + off}")
        if s >= 1:
            G = 32 + 12*(s-1)
            a("s_waitcnt lgkmcnt(6)")
            c0 = "0" if s == 1 else "v[0:15]"; c1 = "0" if s == 1 else "v[16:31]"
            a(f"v_mfma_f32_32x32x16_bf16 v[0:15], {Q4(G)}, {Q4(G+8)}, {c0}")
            a(f"v_mfma_f32_32x32x16_bf16 v[16:31], {Q4(G+4)}, {Q4(G+8)}, {c1}")
    G = 32 + 84
    a("s_waitcnt lgkmcnt(0)")
    a(f"v_mfma_f32_32x32x16_bf16 v[0:15], {Q4(G)}, {Q4(G+8)}, v[0:15]")
    a(f"v_mfma_f32_32x32x16_bf16 v[16:31], {Q4(G+4)}, {Q4(G+8)}, v[16:31]")
    for g in range(5):
        a(f"buffer_store_dwordx4 {Q4(4*g)}, v247, {sWS}, s3 offen offset:{g*768} sc1")
    a("s_branch KF_PUB")

    a.label("KF_QEPI")
    NQE = 0
    a(f"""
    v_lshrrev_b32 v80, 5, {LANE}
    v_and_b32 v81, 31, {LANE}
    v_lshlrev_b32 v82, 19, v80
    v_lshl_add_u32 v144, v81, 4, v82
    v_lshlrev_b32 v82, 17, v80
    v_lshl_add_u32 v145, v81, 3, v82
    s_lshl_b32 s3, {COL}, 2
    s_add_u32 s3, s3, {T1}
    s_lshl_b32 s3, s3, 8
    s_lshl_b32 s4, {RB}, 2
    s_add_u32 s4, s4, {T0}
    s_add_u32 s3, s3, s4
    s_lshl_b32 s5, s3, 10
    s_add_u32 s5, s5, {OFF_PQA}
    s_lshl_b32 s6, s3, 8
    s_add_u32 s6, s6, {OFF_PQC}
    """)
    for hd in range(4):
        L = 20*hd; O = 100 + 10*hd
        for p in range(20): a(f"v_mul_f32 v{L+p}, v246, v{L+p}")
        for p in range(10): a(f"v_cvt_pk_bf16_f32 v{O+p}, v{L+2*p}, v{L+2*p+1}")
        a(f"""
        buffer_store_dwordx4 {Q4(O)}, v144, {sWS}, s5 offen sc1
        buffer_store_dwordx4 {Q4(O+4)}, v144, {sWS}, s5 offen offset:512 sc1
        buffer_store_dwordx2 {P(O+8)}, v145, {sWS}, s6 offen sc1
        s_add_u32 s5, s5, 65536
        s_add_u32 s6, s6, 16384
        """)
    a("s_branch KF_PUB")

    a.label("KF_SPARE")
    a(f"""
    s_or_b32 s3, {RB}, {WAVE}
    s_cmp_lg_u32 s3, 0
    s_cbranch_scc1 KF_NOTOK
    s_memrealtime s[4:5]
    s_waitcnt lgkmcnt(0)
    s_mul_i32 s5, s5, 0x9e3779b1
    s_xor_b32 s4, s4, s5
    s_or_b32 s4, s4, 1
    v_mov_b32 v1, s4
    s_mov_b64 exec, 1
    buffer_store_dword v1, {VZ}, {sDBG}, 0 offen sc1
    s_mov_b64 exec, -1
KF_NOTOK:
    """)
    sync_zero()
    stats_load()
    rl_setup(); rl_guard("KF_SRL"); rl_dma(); a.label("KF_SRL")
    a(f"""
    s_mov_b32 {WSTR}, 3840
    s_sub_u32 s3, {COL}, 9
    s_lshl_b32 {T0}, s3, 2
    s_min_u32 s4, s3, 2
    s_add_u32 {T0}, {T0}, s4
    s_add_u32 {T1}, {T0}, 3
    s_lshl_b32 s4, {T0}, 7
    s_add_u32 s5, s4, 384
    s_cmp_lt_u32 s3, 2
    s_cselect_b32 {T2}, 5, 4
    s_cmp_ge_u32 {COL}, 9
    s_cbranch_scc1 KF_SP2
    s_mov_b32 {WSTR}, 3456
    s_mov_b32 s12, {lo(pG)}
    s_mov_b32 s13, {hi(pG)}
    s_mov_b32 s14, {640*3456}
    s_mov_b32 s32, {lo(pU)}
    s_mov_b32 s33, {hi(pU)}
    s_mov_b32 s34, {640*3456}
    s_mul_i32 s3, {COL}, 3
    s_add_u32 {T0}, s3, 30
    s_add_u32 {T1}, s3, 57
    s_lshl_b32 s4, s3, 7
    s_mov_b32 s5, s4
    s_mov_b32 {T2}, 6
KF_SP2:
    v_lshrrev_b32 v1, 3, {LANE}
    s_lshl_b32 s3, {WAVE}, 3
    v_add_u32 v1, s3, v1
    v_mul_u32_u24 v1, {WSTR}, v1
    v_and_b32 v2, 7, {LANE}
    v_lshl_add_u32 v1, v2, 4, v1
    v_add_u32 v246, s4, v1
    v_add_u32 v247, s5, v1
    s_lshl_b32 {WSTEP}, {WSTR}, 6
    s_mul_i32 {KW}, {WSTEP}, 9
    v_and_b32 v1, 1, {LANE}
    v_lshlrev_b32 v1, 4, v1
    v_mov_b32 v2, 0x3f80
    v_lshlrev_b32 v1, v1, v2
    v_bfe_u32 v2, {LANE}, 1, 3
    """)
    for q in range(4): a(f"v_cmp_eq_u32 vcc, {q}, v2\nv_cndmask_b32 v{28+q}, 0, v1, vcc")
    for r in range(4, 28): a(f"v_mov_b32 v{r}, 0")
    a(f"s_cmp_eq_u32 {T2}, 5\ns_cbranch_scc1 KF_S5\ns_cmp_eq_u32 {T2}, 4\ns_cbranch_scc1 KF_S4L")
    NS = 2
    def sjob(nl, nsl, first):
        def sload(i):
            for l in range(nl):
                r = 32 + 24*(i % 5) + 4*l
                a(f"buffer_load_dwordx4 {Q4(r)}, {'v246' if l < 3 else 'v247'}, {sW if l < 3 else sA}, {KW} offen offset:{128*(l%3)}")
            a(f"s_sub_u32 {KW}, {KW}, {WSTEP}")
        if first:
            for i in range(NS): sload(i)
            return
        for i in range(NS, 4): sload(i)
        for i in range(nsl):
            issued = min(nsl, 4 + i)
            a(f"s_waitcnt vmcnt({nl*(issued - i - 1)})")
            for l in range(nl):
                r = 32 + 24*(i % 5) + 4*l
                a(f"v_mfma_f32_16x16x32_bf16 {Q4(4+4*l)}, {Q4(r)}, v[28:31], {Q4(4+4*l)}")
            if 4 + i < nsl: sload(4 + i)
            if i == NS:
                a("s_call_b64 s[6:7], KF_SF0")
    sjob(6, 6, True); a("s_waitcnt vmcnt(12)\ns_branch KF_SM")
    a.label("KF_S5"); sjob(5, 10, True); a("s_waitcnt vmcnt(10)\ns_branch KF_SM")
    a.label("KF_S4L"); sjob(4, 10, True); a("s_waitcnt vmcnt(8)")
    a.label("KF_SM")
    rl_guard("KF_SRL2"); rl_out(); a.label("KF_SRL2")
    stats_calc()
    a(f"s_waitcnt lgkmcnt(0)\ns_barrier\ns_sub_u32 {U1}, {U1}, 7")
    stats_out("KF_SST", 7)
    a(f"s_cmp_eq_u32 {T2}, 5\ns_cbranch_scc1 KF_S5B\ns_cmp_eq_u32 {T2}, 4\ns_cbranch_scc1 KF_S4B")
    sjob(6, 6, False); a("s_branch KF_SN")
    a.label("KF_S5B"); sjob(5, 10, False); a("s_branch KF_SN")
    a.label("KF_SF0")
    a(f"""
    v_mov_b32 v160, {L_X}
    v_mov_b32 v161, 1
    s_mov_b64 exec, 1
    ds_add_rtn_u32 v161, v160, v161
    s_mov_b64 exec, -1
    s_waitcnt lgkmcnt(0)
    v_readfirstlane_b32 s5, v161
    """)
    aux_signal("KF_SE", 7, 's5')
    a("s_setpc_b64 s[6:7]")
    a.label("KF_S4B"); sjob(4, 10, False)
    a.label("KF_SN")
    T('pre0')
    a(f"""
    v_and_b32 v1, 7, {LANE}
    v_lshlrev_b32 v1, 5, v1
    v_bfe_u32 v2, {LANE}, 4, 1
    v_lshl_add_u32 v1, v2, 4, v1
    v_lshrrev_b32 v2, 5, {LANE}
    v_lshl_add_u32 v1, v2, 8, v1
    s_lshl_b32 s3, {WAVE}, 9
    v_add_u32 v1, s3, v1
    s_mov_b32 exec_lo, 0x00ff00ff
    s_mov_b32 exec_hi, 0x00ff00ff
    """)
    for l in range(6): a(f"ds_write_b128 v1, {Q4(4+4*l)} offset:{l*4096}")
    a(f"""
    s_mov_b64 exec, -1
    s_waitcnt lgkmcnt(0)
    s_barrier
    """)
    a(f"""
    s_cmp_ge_u32 {WAVE}, {T2}
    s_cbranch_scc1 KF_CSDONE
    v_and_b32 v1, 7, {LANE}
    v_lshlrev_b32 v1, 5, v1
    v_lshrrev_b32 v2, 3, {LANE}
    v_lshl_add_u32 v1, v2, 2, v1
    s_lshl_b32 s3, {WAVE}, 12
    v_add_u32 v1, s3, v1
    """)
    for e in range(8): a(f"ds_read2st64_b32 {P(10+2*e)}, v1 offset0:{2*e} offset1:{2*e+1}")
    a("s_waitcnt lgkmcnt(0)")
    n = 8
    while n > 1:
        for e in range(n//2): a(f"v_pk_add_f32 {P(10+2*e)}, {P(10+2*e)}, {P(10+2*(e+n//2))}")
        n //= 2
    a(f"""
    v_add_f32 v10, v10, v11
    s_cmp_lg_u32 {T2}, 6
    s_cbranch_scc1 KF_SNG
    v_and_b32 v1, 15, {LANE}
    v_lshlrev_b32 v1, 7, v1
    s_lshl_b32 s4, {COL}, 11
    s_add_u32 s4, s4, {OFF_FL + 512*128}
KF_SGW:
    s_sleep 4
    buffer_load_dword v2, v1, {sWS}, s4 offen sc1
    s_waitcnt vmcnt(0)
    v_cmp_ne_u32 vcc, {TOK}, v2
    s_add_u32 {SPIN}, {SPIN}, 1
    s_cmp_gt_u32 {SPIN}, {SPINMAX}
    s_cbranch_scc1 KF_SGX
    s_nop 2
    s_cbranch_vccnz KF_SGW
KF_SGX:
    v_and_b32 v1, 3, {LANE}
    v_bfe_u32 v2, {LANE}, 2, 1
    v_lshl_add_u32 v1, v2, 3, v1
    v_bfe_u32 v2, {LANE}, 3, 1
    v_lshl_add_u32 v1, v2, 2, v1
    v_lshlrev_b32 v1, 2, v1
    v_lshrrev_b32 v2, 4, {LANE}
    v_lshl_add_u32 v1, v2, 11, v1
    s_cmp_ge_u32 {WAVE}, 3
    s_cselect_b32 s3, 3, 0
    s_cselect_b32 s5, 64, 0
    s_sub_u32 s3, {WAVE}, s3
    s_mul_i32 s4, {COL}, 3
    s_add_u32 s3, s3, s4
    s_lshl_b32 s3, s3, 13
    s_add_u32 s3, s3, s5
    s_add_u32 s3, s3, {OFF_CSP}
    """)
    for e in range(16): a(f"buffer_load_dword v{12+e}, v1, {sWS}, s3 offen offset:{128*e} sc1")
    a("s_waitcnt vmcnt(0)")
    for e in range(16): a(f"v_add_f32 v10, v10, v{12+e}")
    a(f"""
KF_SNG:
    v_cvt_pk_bf16_f32 v2, v10, v10
    v_and_b32 v3, 0xffff0000, v2
    v_sub_f32 v10, v10, v3
    v_cvt_pk_bf16_f32 v4, v10, v10
    v_and_b32 v3, 0xffff0000, v4
    v_sub_f32 v10, v10, v3
    v_and_b32 v2, 0xffff, v2
    v_or_b32 v4, v2, v3
    v_cvt_pk_bf16_f32 v5, v10, {VZ}
    s_sub_u32 s4, {T1}, 3
    s_cmp_lt_u32 {WAVE}, 3
    s_cselect_b32 s3, {T0}, s4
    s_add_u32 s3, s3, {WAVE}
    s_lshl_b32 s3, s3, 9
    s_add_u32 s3, s3, {OFF_CS}
    v_lshlrev_b32 v1, 3, {LANE}
    buffer_store_dwordx2 v[4:5], v1, {sWS}, s3 offen sc1
KF_CSDONE:
    s_waitcnt vmcnt(0)
    s_barrier
    """)
    a(f"""
    s_cmp_lg_u32 {WAVE}, 0
    s_cbranch_scc1 KF_SSIG
    s_add_u32 s4, {COL}, 1
    s_lshl_b32 s4, s4, 7
    s_add_u32 s4, s4, {FL_AUX}
    """)
    flag_store('s4', 'v160', 'v161')
    a.label("KF_SSIG")
    T('bar0')
    a(f"""
    s_cmp_lg_u32 {WAVE}, 0
    s_cbranch_scc1 KF_SPOLLED
    s_mov_b32 {U1}, {FL_AUX}
    s_cmp_lg_u32 {COL}, 15
    s_cbranch_scc1 KF_SPOLL
    ; aggregator: wait for all 256 F0 flags, then raise FAUX
    v_lshlrev_b32 v1, 7, {LANE}
    s_mov_b32 s4, {OFF_FL + 512*128}
    v_add_u32 v6, 8192, v1
    v_add_u32 v7, 16384, v1
    v_add_u32 v8, 24576, v1
KF_AGG:
    buffer_load_dword v2, v1, {sWS}, s4 offen sc1
    buffer_load_dword v3, v6, {sWS}, s4 offen sc1
    buffer_load_dword v4, v7, {sWS}, s4 offen sc1
    buffer_load_dword v5, v8, {sWS}, s4 offen sc1
    s_waitcnt vmcnt(0)
    v_xor_b32 v2, {TOK}, v2
    v_xor_b32 v3, {TOK}, v3
    v_xor_b32 v4, {TOK}, v4
    v_xor_b32 v5, {TOK}, v5
    v_or3_b32 v2, v2, v3, v4
    v_or_b32 v2, v2, v5
    v_cmp_ne_u32 vcc, 0, v2
    s_add_u32 {SPIN}, {SPIN}, 1
    s_cmp_gt_u32 {SPIN}, {SPINMAX}
    s_cbranch_scc1 KF_AGGX
    s_nop 2
    s_cbranch_vccnz KF_AGG
KF_AGGX:
    """)
    flag_store(U1)
    a(f"""
KF_SPOLL:
    s_sleep 8
    buffer_load_dword v253, {VZ}, {sWS}, {U1} offen sc1
    s_waitcnt vmcnt(0)
    v_readfirstlane_b32 s3, v253
    s_add_u32 {SPIN}, {SPIN}, 1
    s_cmp_gt_u32 {SPIN}, {SPINMAX}
    s_cbranch_scc1 KF_SPOLLED
    s_cmp_lg_u32 s3, {TOK}
    s_cbranch_scc1 KF_SPOLL
KF_SPOLLED:
    s_barrier
    """)
    T('loopend')
    if opt.get("codewarm", 1):
        a(f"""
        s_getpc_b64 s[4:5]
KF_PC2:
        s_sub_u32 s4, s4, KF_PC2-{name}
        s_subb_u32 s5, s5, 0
        s_and_b32 s3, {RB}, 1
        s_lshl_b32 s3, s3, 3
        s_add_u32 s3, s3, {WAVE}
        s_lshl_b32 s3, s3, 10
        v_add_u32 v1, s3, {V16}
        s_mov_b32 s6, KF_TAB-{name}-16
        """)
        for i in range(3):
            a(f"v_min_u32 v2, s6, v1\nglobal_load_dwordx4 v[4:7], v2, s[4:5]\nv_add_u32 v1, 16384, v1")
    kww_init()
    for R in WR:
        for t in wloads(R): a(t)

    def wait_flags(tag, leader, vaddr, soff, mask, ldsw_, val, sleep):
        a(f"""
        v_mov_b32 v246, {ldsw_}
        s_cmp_lg_u32 {WAVE}, {leader}
        s_cbranch_scc1 {tag}_F
        s_mov_b64 exec, {mask}
{tag}_L:
        buffer_load_dword v247, {vaddr}, {sWS}, {soff} offen sc1
        s_waitcnt vmcnt(0)
        v_cmp_ne_u32 vcc, {TOK}, v247
        s_add_u32 {SPIN}, {SPIN}, 1
        s_cmp_gt_u32 {SPIN}, {SPINMAX}
        s_cbranch_scc1 {tag}_X
        s_nop 2
        s_cbranch_vccz {tag}_X
        s_mov_b64 exec, vcc
        s_sleep {sleep}
        s_branch {tag}_L
{tag}_X:
        s_mov_b64 exec, -1
        v_mov_b32 v247, {val}
        ds_write_b32 v246, v247
        s_branch {tag}_D
{tag}_F:
        """)
        lds_spin(tag + "_S", val)
        a.label(f"{tag}_D")
    def lds_spin(tag, val):
        a(f"""
{tag}:
        ds_read_b32 v247, v246
        s_waitcnt lgkmcnt(0)
        v_readfirstlane_b32 s3, v247
        s_add_u32 {SPIN}, {SPIN}, 1
        s_cmp_gt_u32 {SPIN}, {64*SPINMAX}
        s_cbranch_scc1 {tag}_X
        s_cmp_ge_u32 s3, {val}
        s_cbranch_scc1 {tag}_X
        s_sleep 1
        s_branch {tag}
{tag}_X:
        """)
    def lds_arrive(word, ret=False):
        a(f"v_mov_b32 v246, {word}\ns_mov_b64 exec, 1")
        a(f"ds_add_rtn_u32 v247, v246, v253" if ret else "ds_add_u32 v246, v253")
        a("s_mov_b64 exec, -1")
    a.label("KF_PUB")
    KH = KW
    srd(a, sH, 's[16:17]', WS_SIZE)
    a(f"""
    s_mul_i32 {KH}, {RB64}, {HO_RB}
    s_lshl_b32 s4, {FLG}, 12
    s_add_u32 {KH}, {KH}, s4
    s_mul_i32 {LB}, {WAVE}, 20480
    s_bfe_u32 s4, {PAR}, 0x80010
    s_lshl_b32 s4, s4, 4
    s_add_u32 s4, s4, {RB}
    s_lshl_b32 s4, s4, 7
    s_add_u32 s4, s4, {OFF_FL}
    v_mov_b32 v253, 1
    v_mov_b32 v231, 0
    v_add_u32 v249, {LB}, {V16}
    v_lshlrev_b32 v248, 7, {LANE}         ; lane*128
    """)
    T('epiend')
    a(f"""
    s_cmp_lt_u32 {WAVE}, 4
    s_cbranch_scc1 KF_PUB1
    s_cmp_ge_u32 {OB}, 5
    s_cbranch_scc1 KF_PUB1
    ; s waves with an o item: first FQ poll and the w_phi fragments travel with the store acknowledgements
    s_mul_i32 {T1}, {OB}, 3
    s_add_u32 {T1}, {T1}, 1
    s_cmp_eq_u32 {OB}, 0
    s_cselect_b32 {T1}, 0, {T1}
    s_cselect_b32 s5, 3, 2
    s_lshr_b32 s3, {HEAD}, 4
    s_add_u32 s3, s3, 13
    s_lshl_b32 s3, s3, 4
    s_add_u32 s3, s3, {T1}
    s_lshl_b32 s3, s3, 7
    s_add_u32 {U1}, s3, {OFF_FL}
    v_min_u32 v231, s5, {LANE}
    v_lshlrev_b32 v231, 7, v231
    buffer_load_dword v230, v231, {sWS}, {U1} offen sc1
    """)
    srd(a, sA, pPHI, 25600)
    a(f"""
    v_and_b32 v240, 31, {LANE}            ; n / m
    v_lshrrev_b32 v241, 5, {LANE}         ; hh
    v_bfe_u32 v226, v240, 2, 1            ; Ho
    v_and_b32 v227, 3, v240
    v_lshrrev_b32 v228, 3, v240
    v_lshl_add_u32 v227, v228, 2, v227    ; g
    v_lshl_add_u32 v228, v226, 3, v227    ; 8Ho+g
    v_lshl_add_u32 v229, v226, 1, v227
    v_add_u32 v229, 8, v229               ; 16+2Ho+(g-8)
    v_cmp_lt_u32 vcc, 7, v227
    v_cndmask_b32 v228, v228, v229, vcc
    v_min_u32 v228, 19, v228
    v_lshlrev_b32 v228, 1, v228
    v_mul_u32_u24 v229, 320, v241
    v_add_u32 v229, v229, v228
    v_lshl_add_u32 v228, v241, 30, v228
    s_mul_i32 s3, {HEAD}, 800
    """)
    for jx in range(8): a(f"buffer_load_ushort v{40+jx}, v229, {sA}, s3 offen offset:{40*jx}")
    for jx in range(4): a(f"buffer_load_ushort v{48+jx}, v228, {sA}, s3 offen offset:{640+40*jx}")
    a.label("KF_PUB1")
    a("s_waitcnt vmcnt(0) lgkmcnt(0)")
    lds_arrive(L_P, True)
    a(f"""
    s_waitcnt lgkmcnt(0)
    v_readfirstlane_b32 s3, v247
    s_cmp_lg_u32 s3, 7
    s_cbranch_scc1 KF_PUB2
    """)
    flag_store('s4')
    T('pub')
    a.label("KF_PUB2")
    a(f"v_mov_b32 v246, {L_P}")
    a(f"s_cmp_lt_u32 {WAVE}, 4\ns_cselect_b32 s3, 1, {ROLE}\ns_cmp_lg_u32 s3, 1\ns_cbranch_scc1 KF_PS_X")
    lds_spin("KF_PS", 8)
    def slot_dma(off, pace=None):
        for mt in range(5):
            a(f"s_add_u32 m0, {LB}, {off + (4096 if mt == 4 else 0)}")
            if mt < 4: a(f"buffer_load_dwordx4 {V16}, {sWS}, {KWW} offen offset:{1024*mt} sc1 lds")
            else: a(f"buffer_load_dwordx4 {V16B}, {sWS}, {KWW} offen sc1 lds")
            if pace is not None: a(f"s_waitcnt vmcnt({pace})")
        a(f"s_add_u32 {KWW}, {KWW}, 5120")
    VT = ['v232', 'v233', 'v234', 'v235']
    def rot_addrs():
        for t in range(4):
            a(f"s_add_u32 s3, {WAVE}, {t}\ns_and_b32 s3, s3, 3\ns_lshl_b32 s3, s3, 10\nv_add_u32 {VT[t]}, s3, {V16}")
    def gather_addrs(base, regs):
        for t in range(1, 4):
            a(f"s_sub_u32 s3, {WAVE}, {t}\ns_and_b32 s3, s3, 3\ns_mul_i32 s3, s3, 20480\ns_add_u32 s3, s3, {base + (t-1)*5120}\nv_add_u32 {regs[t-1]}, s3, {V16}")
    def hl(b): return [f"buffer_load_dwordx4 {Q4(b+4*t)}, {VT[t]}, {sH}, {KH} offen sc1" + (f"\ns_add_u32 {KH}, {KH}, 4096" if t == 3 else "") for t in range(4)]
    def step_mfma(R, Hb, first, X=(), last=False):
        X = list(X)
        order = [(mt, t) for mt in range(5) for t in range(4)] if not last else [(mt, t) for t in (1, 2, 3, 0) for mt in range(5)]
        for i, (mt, t) in enumerate(order):
            c = 4*(t*5+mt)
            a(f"v_mfma_f32_16x16x32_bf16 {Q4(c)}, {Q4(R+4*mt)}, {Q4(Hb+4*t)}, {'0' if first else Q4(c)}")
            if X and i % 2 == 1: a(X.pop(0))
        for x in X: a(x)
    def scatter():
        for k in range(15): a(f"ds_write_b128 v249, {Q4(20+4*k)} offset:{1024*k}")
    def gather(base, regs):
        for mt in range(5):
            for t in range(3): a(f"ds_read_b128 {Q4(base+12*mt+4*t)}, {regs[t]} offset:{1024*mt}")
    def reduce(base, mt, pk=True):
        b = base + 12*mt
        a(f"s_waitcnt lgkmcnt({3*(4-mt)})")
        if not pk:
            for k in range(3):
                for q in range(4): a(f"v_add_f32 v{4*mt+q}, v{4*mt+q}, v{b+4*k+q}")
            return
        for o in (0, 2):
            a(f"v_pk_add_f32 {P(4*mt+o)}, {P(4*mt+o)}, {P(b+o)}\nv_pk_add_f32 {P(b+4+o)}, {P(b+4+o)}, {P(b+8+o)}")
        for o in (0, 2): a(f"v_pk_add_f32 {P(4*mt+o)}, {P(4*mt+o)}, {P(b+4+o)}")
    rot_addrs()
    def q_rest(tag, pace):
        a(f"s_cmp_lg_u32 {ROLE}, 2\ns_cbranch_scc1 {tag}")
        for R in WR[NTQ+NQE:]:
            for t in wloads(R):
                a(t)
                if pace: a(f"s_waitcnt vmcnt({pace})")
        a.label(tag)
    a(f"s_cmp_ge_u32 {WAVE}, 4\ns_cbranch_scc1 KF_SW")
    q_rest("KF_NQW", opt.get("pace", 8))

    LOFF = [0, 5120, 10240, 15360, 4*20480+5120, 4*20480+10240, 4*20480+15360]
    NL = len(LOFF)
    for k, off in enumerate(LOFF):
        if k == 4 and NE > 1:
            a(f"s_cmp_lg_u32 {ROLE}, 0\ns_cbranch_scc1 KF_S4")
            if NE == 4: a(f"s_cmp_ge_u32 {WAVE}, 2\ns_cselect_b32 s3, 2, 3\ns_mul_i32 s3, s3, 5120\ns_add_u32 {KWW}, {KWW}, s3\ns_branch KF_NOS6")
            else: a(f"s_add_u32 {KWW}, {KWW}, {5120*(NE-1)}\ns_branch KF_SK")
            a.label("KF_S4")
        if k == 3 + NE and 1 < NE < 4: a.label("KF_SK")
        if k == 6: a(f"s_cmp_ge_u32 {WAVE}, 2\ns_cbranch_scc1 KF_NOS6")
        slot_dma(off, opt.get("pace", 8))
    a.label("KF_NOS6")
    a(f"""
    v_add_u32 v245, {4*20480}, v249
    v_lshlrev_b32 v243, 11, {LANE}
    s_lshr_b32 s3, {RB64}, 1
    s_lshl_b32 s3, s3, 7
    s_add_u32 {T1}, s3, {OFF_FL}
    """)
    gather_addrs(0, ['v240', 'v241', 'v242'])
    T('dma')
    wait_flags("KF_WH", 0, 'v243', T1, "0x1ff", L_GOH, 1, opt.get("slh", 3))
    if opt.get("quiet"):
        a(f"v_mov_b32 v246, {[L_IMG, L_O][opt['quiet']-1]}\ns_cmp_ge_u32 {OB}, 5\ns_cbranch_scc1 KF_QS_X")
        lds_spin("KF_QS", 4)
    T('fh')
    HD = opt.get("hdepth", 3)
    log = []
    for d in range(HD):
        for x in hl(80 + 16*d): a(x)
        log += [('H', d)]*4
    def need(tags):
        last = max(i for i, t in enumerate(log) if t in tags)
        return len(log) - 1 - last
    for st in range(14):
        tags = [('H', st)] + ([('W', st)] if st >= 4 + NL else [])
        a(f"s_waitcnt vmcnt({need(tags)})" + (f" lgkmcnt({5*min(2, 3+NL-st)})" if 4 <= st < 4 + NL else ""))
        X = []
        if st + HD < 14:
            X += hl(80 + 16*((st + HD) % 4)); log += [('H', st + HD)]*4
            if st + HD == 10: X[-1] += f"\ns_cmp_ge_u32 {WAVE}, 2\ns_cselect_b32 s3, 4096, 0\ns_sub_u32 {KH}, {KH}, s3"
        nx = st + 3; Rn = WR[nx % 4]
        if 4 <= nx < 4 + NL:
            off = LOFF[nx - 4]
            X += [f"ds_read_b128 {Q4(Rn+4*mt)}, {'v249' if off < 65536 else 'v245'} offset:{(off if off < 65536 else off - 4*20480) + 1024*mt}" for mt in range(5)]
        elif 4 + NL <= nx < 14:
            X += wloads(Rn); log += [('W', nx)]*5
        if st == 10:
            for x in X: a(x)
            X = []
            a(f"s_cmp_ge_u32 {WAVE}, 2\ns_cbranch_scc1 KF_SKIP10")
        step_mfma(WR[st % 4], 80 + 16*(st % 4), st == 0, X, st == 13)
        if st == 10: a.label("KF_SKIP10")
        if st == opt.get("dgate", 10): lds_arrive(L_Y)
    T('gemmend')
    scatter()
    a("s_waitcnt lgkmcnt(0)")
    lds_arrive(L_D)
    lds_spin("KF_DS", 4)
    gather(80, ['v240', 'v241', 'v242'])
    for mt in range(5): reduce(80, mt, False)
    for mt in range(5):
        b = 4*mt
        for q in range(4): a(f"v_mul_f32 v{40+q}, {f2u(-LOG2E)}, v{b+q}")
        for q in range(4): a(f"v_exp_f32 v{40+q}, v{40+q}")
        for q in range(4): a(f"v_add_f32 v{40+q}, 1.0, v{40+q}")
        for q in range(4): a(f"v_rcp_f32 v{40+q}, v{40+q}")
        for q in range(4): a(f"v_mul_f32 v{b+q}, v{b+q}, v{40+q}")
        a(f"ds_write_b128 v249, {Q4(b)} offset:{15360 + 1024*mt}")
    a("s_waitcnt lgkmcnt(0)")
    lds_arrive(L_G)
    T('dready')
    a("s_branch KF_FIN")

    a.label("KF_SW")
    a(f"s_setprio {opt.get('sprio', 2)}")
    q_rest("KF_NQW2", opt.get("pace", 8))
    a(f"""
    s_cmp_ge_u32 {OB}, 5
    s_cbranch_scc1 KF_WAITO
    s_sub_u32 {T0}, {WAVE}, 4
    s_lshl_b32 {T1}, {T1}, 2
    s_add_u32 {T1}, {T1}, {T0}
    s_lshl_b32 s3, {HEAD}, 6
    s_add_u32 s3, s3, {T1}
    s_lshl_b32 {T2}, s3, 10
    s_add_u32 {T2}, {T2}, {OFF_PQA}
    s_lshl_b32 {T3}, s3, 8
    s_add_u32 {T3}, {T3}, {OFF_PQC}
    v_lshlrev_b32 v244, 3, v240
KF_WQ:
    v_cmp_ne_u32 vcc, {TOK}, v230
    s_add_u32 {SPIN}, {SPIN}, 1
    s_cmp_gt_u32 {SPIN}, {SPINMAX}
    s_cbranch_scc1 KF_WQX
    s_nop 2
    s_cbranch_vccz KF_WQX
    s_sleep {opt.get('slq', 3)}
    buffer_load_dword v230, v231, {sWS}, {U1} offen sc1
    s_waitcnt vmcnt(0)
    s_branch KF_WQ
KF_WQX:
    """)
    T('fq')
    for i in range(4):
        if i == 3: a(f"s_cmp_lg_u32 {OB}, 0\ns_cbranch_scc1 KF_Q3")
        a(f"buffer_load_dwordx4 {Q4(6*i)}, {V16}, {sWS}, {T2} offen sc1\nbuffer_load_dwordx2 {P(6*i+4)}, v244, {sWS}, {T3} offen offset:{1024*i} sc1\ns_add_u32 {T2}, {T2}, 4096")
    a.label("KF_Q3")
    for jx in range(6): a(f"v_lshl_or_b32 v{24+jx}, v{41+2*jx}, 16, v{40+2*jx}")
    a(f"""
    s_lshl_b32 s3, {T0}, 6
    v_add_u32 v242, s3, {LANE}            ; item
    v_lshlrev_b32 v226, 4, v242
    v_cmp_gt_u32 vcc, 240, v242
    v_cndmask_b32 v243, v255, v226, vcc
    s_mul_i32 {T2}, {HEAD}, {16*3840}
    s_add_u32 {T2}, {T2}, {OFF_P}
    v_mul_u32_u24 v226, 171, v242
    v_lshrrev_b32 v226, 12, v226          ; quad
    v_mul_u32_u24 v227, 24, v226
    v_sub_u32 v227, v242, v227
    v_mul_u32_u24 v227, 80, v227
    v_cmp_lt_u32 vcc, 4, v226
    v_cndmask_b32 v228, 0, 1, vcc         ; H
    v_mul_u32_u24 v229, 5, v228
    v_sub_u32 v226, v226, v229            ; qq
    v_lshrrev_b32 v229, 1, v226
    v_lshlrev_b32 v229, 5, v229
    v_and_b32 v230, 1, v226
    v_lshl_add_u32 v229, v230, 3, v229
    v_cmp_eq_u32 vcc, 4, v226
    v_cndmask_b32 v230, 4, 3, vcc
    v_lshlrev_b32 v228, v230, v228
    v_add3_u32 v245, v227, v228, v229
    v_mov_b32 v226, 2000
    v_cmp_gt_u32 vcc, 240, v242
    v_cndmask_b32 v245, v226, v245, vcc
    v_add_u32 v245, {IMG}, v245
    v_bfe_u32 v226, v240, 2, 1
    v_and_b32 v227, 3, v240
    v_lshrrev_b32 v228, 3, v240
    v_lshl_add_u32 v227, v228, 2, v227
    v_lshl_add_u32 v229, v226, 3, v227
    v_add_u32 v230, 8, v227
    v_cmp_lt_u32 vcc, 7, v227
    v_cndmask_b32 v229, v229, v230, vcc
    v_min_u32 v229, 20, v229
    v_mul_u32_u24 v229, 80, v229
    v_add_u32 v229, {IMG}, v229
    v_lshl_add_u32 v238, v241, 4, v229
    v_lshl_add_u32 v239, v241, 3, v229
    v_and_b32 v226, 15, v240
    v_lshrrev_b32 v227, 4, v240
    v_lshlrev_b32 v227, 10, v227
    v_lshl_add_u32 v228, v226, 4, v227
    v_lshl_add_u32 v236, v241, 8, v228    ; main
    v_lshl_add_u32 v228, v226, 3, v227
    s_bfe_u32 s3, {HEAD}, 0x20001         ; (h&7)>>1
    s_sub_u32 s4, 4, s3
    s_lshl_b32 s4, s4, 12
    s_lshl_b32 s5, s3, 7
    s_add_u32 s4, s4, s5
    v_add_u32 v228, s4, v228
    v_cmp_gt_u32 vcc, 32, {LANE}
    v_cndmask_b32 v237, v255, v228, vcc
    s_lshr_b32 s4, {HEAD}, 3
    s_mul_i32 s4, s4, 5
    s_add_u32 s4, s4, s3
    s_add_u32 s4, s4, 54
    s_lshl_b32 s4, s4, 12
    s_and_b32 s5, {HEAD}, 1
    s_lshl_b32 s5, s5, 9
    s_add_u32 s4, s4, s5
    s_lshr_b32 s5, {T1}, 1
    s_mul_i32 s5, s5, {HO_RB}
    s_add_u32 s4, s4, s5
    s_and_b32 s5, {T1}, 1
    s_lshl_b32 s5, s5, 11
    s_add_u32 {T3}, s4, s5
    s_lshr_b32 s3, {HEAD}, 3
    s_add_u32 s3, s3, 9
    s_lshl_b32 s3, s3, 11
    s_add_u32 {U1}, s3, {OFF_FL}
    s_waitcnt vmcnt(0)
    """)
    for i in range(4):
        D = 80 + 16*i
        a(f"v_mfma_f32_32x32x16_bf16 v[{D}:{D+15}], v[24:27], {Q4(6*i)}, 0\nv_mfma_f32_32x32x8_bf16 v[{D}:{D+15}], v[28:29], {P(6*i+4)}, v[{D}:{D+15}]")
    for i in range(4):
        Lg = 80 + 16*i; N = 30; B = 40 + 10*i
        if i == 3: a(f"s_cmp_lg_u32 {OB}, 0\ns_cbranch_scc1 KF_SM3")
        a(f"v_max3_f32 v226, v{Lg}, v{Lg+1}, v{Lg+2}\nv_min3_f32 v227, v{Lg}, v{Lg+1}, v{Lg+2}")
        for p in range(3, 9, 2): a(f"v_max3_f32 v226, v226, v{Lg+p}, v{Lg+p+1}\nv_min3_f32 v227, v227, v{Lg+p}, v{Lg+p+1}")
        a(f"""
        v_max_f32 v226, v226, v{Lg+9}
        v_min_f32 v227, v227, v{Lg+9}
        v_mov_b32 v228, v226
        v_mov_b32 v229, v227
        v_permlane32_swap_b32 v226, v228
        v_permlane32_swap_b32 v227, v229
        v_max_f32 v226, v226, v228
        v_min_f32 v227, v227, v229
        v_mul_f32 v226, {f2u(-LOG2E)}, v226
        v_mul_f32 v228, {f2u(LOG2E)}, v227
        """)
        for p in range(10):
            a(f"v_fmamk_f32 v{N+p}, v{Lg+p}, {f2u(-LOG2E)}, v228")
            a(f"v_fmamk_f32 v{Lg+p}, v{Lg+p}, {f2u(LOG2E)}, v226")
        for p in range(10): a(f"v_exp_f32 v{N+p}, v{N+p}\nv_exp_f32 v{Lg+p}, v{Lg+p}")
        a(f"v_add_f32 v227, v{N}, v{N+1}\nv_add_f32 v226, v{Lg}, v{Lg+1}")
        for p in range(2, 10): a(f"v_add_f32 v227, v227, v{N+p}\nv_add_f32 v226, v226, v{Lg+p}")
        a(f"""
        v_mov_b32 v228, v226
        v_mov_b32 v229, v227
        v_permlane32_swap_b32 v226, v228
        v_permlane32_swap_b32 v227, v229
        v_add_f32 v226, v226, v228
        v_add_f32 v227, v227, v229
        v_rcp_f32 v226, v226
        v_rcp_f32 v228, v227
        """)
        for p in range(10):
            a(f"v_mul_f32 v{Lg+p}, v226, v{Lg+p}\nv_mul_f32 v{N+p}, v228, v{N+p}")
        for p in range(5): a(f"v_cvt_pk_bf16_f32 v{B+p}, v{Lg+2*p}, v{Lg+1+2*p}\nv_cvt_pk_bf16_f32 v{B+5+p}, v{N+2*p}, v{N+1+2*p}")
    a.label("KF_SM3")
    T('o_sm')
    wait_flags("KF_WKV", 4, 'v248', U1, "0xffff", L_GOS, 2, opt.get("slkv", 2))
    T('fkv')
    for i in range(16):
        a(f"buffer_load_dwordx4 {Q4(80+4*i)}, v243, {sWS}, {T2} offen sc1\ns_add_u32 {T2}, {T2}, 3840")
    for i in range(1, 8):
        a(f"s_waitcnt vmcnt({14-2*i})" if i > 0 else "")
        for q in range(8): a(f"v_add_f32 v{80+q}, v{80+q}, v{80+8*i+q}")
    a(f"""
    v_add_f32 v80, v80, v84
    v_add_f32 v81, v81, v85
    v_add_f32 v82, v82, v86
    v_add_f32 v83, v83, v87
    v_cvt_pk_bf16_f32 v80, v80, v81
    v_cvt_pk_bf16_f32 v81, v82, v83
    ds_write_b64 v245, v[80:81]
    s_waitcnt lgkmcnt(0)
    """)
    T('o_part')
    lds_arrive(L_IMG)
    lds_spin("KF_IS", 4)
    a(f"""
    ds_read_b128 v[0:3], v238
    ds_read_b128 v[4:7], v238 offset:32
    ds_read_b64 v[8:9], v239 offset:64
    s_waitcnt lgkmcnt(0)
    """)
    def omfma(i):
        D = 80 + 16*i; B = 40 + 10*i
        a(f"""
        v_mfma_f32_32x32x16_bf16 v[{D}:{D+15}], v[0:3], {Q4(B)}, 0
        v_mfma_f32_32x32x16_bf16 v[{D}:{D+15}], v[4:7], {Q4(B+4)}, v[{D}:{D+15}]
        v_mfma_f32_32x32x8_bf16 v[{D}:{D+15}], v[8:9], {P(B+8)}, v[{D}:{D+15}]
        """)
    def onorm(i):
        D = 80 + 16*i; O = 10 + 6*i
        a(f"v_add_f32 v{D+12}, {f2u(1e-6)}, v{D+12}\nv_rcp_f32 v{D+12}, v{D+12}")
        for p in range(12): a(f"v_mul_f32 v{D+p}, v{D+12}, v{D+p}")
        for p in range(6): a(f"v_cvt_pk_bf16_f32 v{O+p}, v{D+2*p}, v{D+1+2*p}")
        a(f"""
        buffer_store_dwordx4 {Q4(O)}, v236, {sWS}, {T3} offen sc1
        buffer_store_dwordx2 {P(O+4)}, v237, {sWS}, {T3} offen sc1
        s_add_u32 {T3}, {T3}, {2*HO_RB}
        """)
    omfma(0); omfma(1); onorm(0); omfma(2); onorm(1)
    a(f"s_cmp_lg_u32 {OB}, 0\ns_cbranch_scc1 KF_O3")
    omfma(3); onorm(2); onorm(3)
    a("s_branch KF_O4\nKF_O3:\ns_nop 3")
    onorm(2)
    a.label("KF_O4")
    T('o_st')
    a(f"""
    s_lshl_b32 s5, {OB}, 5
    s_add_u32 s5, s5, {HEAD}
    s_add_u32 s5, s5, 256
    s_lshl_b32 s5, s5, 7
    s_add_u32 s5, s5, {OFF_FL}
    s_waitcnt vmcnt(0)
    """)
    lds_arrive(L_O, True)
    a(f"""
    s_waitcnt lgkmcnt(0)
    v_readfirstlane_b32 s3, v247
    s_cmp_lg_u32 s3, 3
    s_cbranch_scc1 KF_WAITO
    """)
    flag_store('s5')
    a.label("KF_WAITO")
    T('osig')
    a(f"s_setprio {opt.get('sprio2', 0)}")
    if NE: a(f"s_cmp_eq_u32 {ROLE}, 0\ns_cbranch_scc1 KF_NOS0")
    slot_dma(0)
    a.label("KF_NOS0")
    srd(a, sA, pOUT, 2621440)
    a(f"""
    v_and_b32 v244, 15, {LANE}
    v_mul_u32_u24 v244, 1280, v244
    v_lshrrev_b32 v243, 4, {LANE}
    v_lshl_add_u32 v244, v243, 3, v244
    s_lshl_b32 s3, {RB64}, 2
    s_add_u32 s3, s3, {WAVE}
    s_sub_u32 s3, s3, 4
    s_mul_i32 s3, s3, {16*1280}
    s_mul_i32 s4, {CT}, 160
    s_add_u32 {T0}, s3, s4
    s_lshr_b32 s3, {RB64}, 1
    s_max_u32 s3, s3, 1
    s_sub_u32 s3, s3, 1
    s_mul_i32 s3, s3, 86
    s_lshr_b32 s3, s3, 8                  ; o block
    s_add_u32 s3, s3, 8
    s_lshl_b32 s3, s3, 12
    s_add_u32 {U1}, s3, {OFF_FL}
    s_mov_b32 s6, -1
    s_mov_b32 s7, 0
    v_lshlrev_b32 v243, 3, {LANE}
    """)
    for t in range(4): a(f"v_sub_u32 v{236+t}, {VT[t]}, v243")
    gather_addrs(4*20480, ['v240', 'v241', 'v242'])
    a(f"v_subrev_u32 v245, {4*20480 - 15360}, v249")
    wait_flags("KF_WO", 4, 'v248', U1, "s[6:7]", L_GOS, 3, opt.get("slo", 2))
    T('fo')
    if opt.get("dgate", 10) >= 0:
        a(f"v_mov_b32 v246, {L_Y}")
        lds_spin("KF_DG", 4)
    for d in range(4):
        for x in hl(80 + 16*d): a(x)
    for st in range(5):
        X = []
        if st == 1:
            X = [f"buffer_load_dwordx2 {P(80+4*t+2*i)}, v{236+t}, {sH}, {KH} offen offset:{512*i} sc1" for t in range(4) for i in range(2)]
            a("s_waitcnt vmcnt(8)")
            for x in X: a(x)
            X = [f"ds_read_b128 {Q4(WR[0]+4*mt)}, v249 offset:{1024*mt}" for mt in range(5)]
        elif st == 2:
            a("s_waitcnt vmcnt(12)")
            X = [f"buffer_load_dwordx2 {P(WR[1]+2*mt)}, v244, {sX}, {T0} offen offset:{32*mt}" for mt in range(5)]
        elif st == 4:
            a(f"v_mov_b32 v246, {L_D}")
            lds_spin("KF_FD", 4)
            a("s_waitcnt vmcnt(5)")
        else: a(f"s_waitcnt vmcnt({[12,0,0,13][st]})")
        step_mfma(WR[st % 4], 80 + 16*(st % 4), st == 0, X, st == 4)
    T('gemmend')
    scatter()
    a("s_waitcnt vmcnt(0)")
    XU = WR[2]; GG = WR[3]
    for mt in range(5):
        X = WR[1] + 2*mt
        a(f"""
        v_lshlrev_b32 v{XU+4*mt}, 16, v{X}
        v_and_b32 v{XU+1+4*mt}, 0xffff0000, v{X}
        v_lshlrev_b32 v{XU+2+4*mt}, 16, v{X+1}
        v_and_b32 v{XU+3+4*mt}, 0xffff0000, v{X+1}
        """)
    a("s_waitcnt lgkmcnt(0)")
    lds_arrive(L_F)
    T('f_wr')
    a(f"v_mov_b32 v246, {L_G}")
    lds_spin("KF_FG", 4)
    for mt in range(5): a(f"ds_read_b128 {Q4(GG+4*mt)}, v245 offset:{1024*mt}")
    a(f"v_mov_b32 v246, {L_F}")
    lds_spin("KF_FF", 4)
    T('f_bar')
    gather(80, ['v240', 'v241', 'v242'])
    for mt in range(5):
        reduce(80, mt)
        b = 4*mt
        for o in (0, 2): a(f"v_pk_fma_f32 {P(b+o)}, {P(b+o)}, {P(GG+b+o)}, {P(XU+b+o)}")
        a(f"""
        v_cvt_pk_bf16_f32 v{20+2*mt}, v{b}, v{b+1}
        v_cvt_pk_bf16_f32 v{21+2*mt}, v{b+2}, v{b+3}
        buffer_store_dwordx2 {P(20+2*mt)}, v244, {sA}, {T0} offen offset:{32*mt} {opt.get('outst','')}
        """)
    a.label("KF_FIN")
    T.finish(sWS, WAVE, WS_SIZE - 131072)
    if opt.get("amp"):
        a(f"""
        s_waitcnt vmcnt(0)
        s_memrealtime s[92:93]
        s_waitcnt lgkmcnt(0)
        s_sub_u32 s92, s92, s90
        s_mul_i32 s92, s92, {opt['amp']+1}
KF_AMP:
        s_sleep 8
        s_memrealtime s[94:95]
        s_waitcnt lgkmcnt(0)
        s_sub_u32 s94, s94, s90
        s_cmp_lt_u32 s94, s92
        s_cbranch_scc1 KF_AMP
        """)
    a.label("KF_END")
    a("s_endpgm")
    a(".p2align 5\n.type KF_TAB,@object")
    a.label("KF_TAB")
    for e in table(opt): a(".long %d, %d, %d, %d, %d, %d, %d, %d" % e)
```
